```python
import torch

def _softmax(x, axis=-1):
    return torch.softmax(x, dim=axis)

def _gelu(x):
    return torch.nn.functional.gelu(x, approximate='tanh')

def _silu(x):
    return torch.nn.functional.silu(x)

def _sigmoid(x):
    return torch.sigmoid(x)

def _layernorm(x, axis=-1, eps=1e-05):
    m = x.mean(dim=axis, keepdim=True)
    v = x.var(dim=axis, keepdim=True, unbiased=False)
    return (x - m) / torch.sqrt(v + eps)

def _scatter_add(tgt, idx, src, axis=0):
    return tgt.clone().index_add_(axis, idx, src)

def _segment_sum(src, seg, n):
    out = torch.zeros((n,) + src.shape[1:], dtype=src.dtype)
    return out.index_add_(0, seg, src)

def _pad(x, pw):
    flat = tuple((v for pair in reversed(pw) for v in pair))
    return torch.nn.functional.pad(x, flat)
kernel_name = 'adaLN_cond__sliding_local_dilated__mixer_channel_mlp__prompt'

def setup_inputs():

    _w = lambda a: (lambda t: t.to(torch.bfloat16) if t.is_floating_point() else t)(torch.as_tensor(a))

    def _A_setup():
        B, S, D = (1, 2048, 512)
        return {'x': _w((lambda *s: torch.randn(*s, dtype=torch.bfloat16) * 0.05)(B, S, D)), 'wqkv': _w((lambda *s: torch.randn(*s, dtype=torch.bfloat16) * 0.05)(D, 3 * D)), 'wo': _w((lambda *s: torch.randn(*s, dtype=torch.bfloat16) * 0.05)(D, D))}
    _A_in = _A_setup()

    def _B_setup():
        B, S, D, F = (1, 2048, 512, 1792)
        return {'x': _w((lambda *s: torch.randn(*s, dtype=torch.bfloat16) * 0.05)(B, S, D)), 'w1': _w((lambda *s: torch.randn(*s, dtype=torch.bfloat16) * 3.2)(D, F) * D ** (-0.5)), 'b1': _w((lambda *s: torch.randn(*s, dtype=torch.bfloat16) * 1.6)(F)), 'w2': _w((lambda *s: torch.randn(*s, dtype=torch.bfloat16) * 3.2)(F, D) * F ** (-0.5)), 'b2': _w((lambda *s: torch.randn(*s, dtype=torch.bfloat16) * 3.2)(D))}
    _B_in = _B_setup()
    return {'A_x': _A_in['x'], 'A_wqkv': _A_in['wqkv'], 'A_wo': _A_in['wo'], 'B_x': _B_in['x'], 'B_w1': _B_in['w1'], 'B_b1': _B_in['b1'], 'B_w2': _B_in['w2'], 'B_b2': _B_in['b2'], 'c': _w((lambda *s: torch.randn(*s, dtype=torch.bfloat16) * 0.2)(1, 512) * 8.0), 'w_mod': _w((lambda *s: torch.randn(*s, dtype=torch.bfloat16) * 0.2)(512, 6 * 512) * 512 ** (-0.5) * 8.0)}

def reference(A_x, A_wqkv, A_wo, B_x, B_w1, B_b1, B_w2, B_b2, c, w_mod):

    def _A_ref(x, wqkv, wo):
        B, S, D = x.shape
        H = 32
        Dh = D // H
        W, dil = (8, 2)
        qkv = (lambda x, *d: x.permute(*d))((x @ wqkv).reshape(B, S, 3, H, Dh), 2, 0, 3, 1, 4)
        q, k, v = (qkv[0], qkv[1], qkv[2])
        scale = Dh ** (-0.5)
        pos = torch.arange(S)
        off = torch.arange(W) * dil
        idx = pos[:, None] - off[None, :]
        mask = idx >= 0
        idx_c = torch.where(mask, idx, 0).reshape(-1)
        kg = k[:, :, idx_c, :].reshape(B, H, S, W, Dh)
        vg = v[:, :, idx_c, :].reshape(B, H, S, W, Dh)
        logits = torch.einsum('bhsd,bhswd->bhsw', q, kg) * scale
        logits = torch.where(mask[None, None, :, :], logits, -1000000000.0)
        attn = _softmax(logits, axis=-1)
        o = torch.einsum('bhsw,bhswd->bhsd', attn, vg)
        return (lambda x, *d: x.permute(*d))(o, 0, 2, 1, 3).reshape(B, S, D) @ wo

    def _B_ref(x, w1, b1, w2, b2):
        y = _layernorm(x, axis=-1)
        h = _gelu(torch.einsum('bsd,df->bsf', y, w1) + b1)
        return torch.einsum('bsf,fd->bsd', h, w2) + b2
    x = A_x
    mod = (_silu(c) @ w_mod).reshape(c.shape[0], 6, 1, -1)
    sa, ca, ga, sb, cb, gb = (mod[:, 0].clone(), mod[:, 1].clone(), mod[:, 2].clone(), mod[:, 3].clone(), mod[:, 4].clone(), mod[:, 5].clone())
    h = _layernorm(x, axis=-1) * (1 + ca) + sa
    x = x + ga * _A_ref(h, A_wqkv, A_wo)
    h = _layernorm(x, axis=-1) * (1 + cb) + sb
    x = x + gb * _B_ref(h, B_w1, B_b1, B_w2, B_b2)
    return x
```

```python
import re

TRANS = ('v_exp_f32', 'v_log_f32', 'v_rcp_f32', 'v_rsq_f32', 'v_sqrt_f32', 'v_sin_f32', 'v_cos_f32')


def regs_of(tok):
    tok = tok.strip()
    tok = tok.lstrip('-')
    m = re.fullmatch(r'abs\((.*)\)', tok)
    if m:
        tok = m.group(1)
    tok = tok.strip('|')
    m = re.fullmatch(r'([vas])\[(\d+):(\d+)\]', tok)
    if m:
        return [f'{m.group(1)}{i}' for i in range(int(m.group(2)), int(m.group(3)) + 1)]
    m = re.fullmatch(r'([vas])(\d+)', tok)
    if m:
        return [tok]
    if tok in ('vcc', 'exec'):
        return [tok]
    if tok in ('vcc_lo', 'vcc_hi'):
        return ['vcc']
    if tok in ('exec_lo', 'exec_hi'):
        return ['exec']
    if tok == 'm0':
        return ['m0']
    return []


class Ins:
    __slots__ = ('text', 'op', 'kind', 'defs', 'uses', 'tag', 'twin', 'mf', 'wide', 'dpp', 'opsA', 'opsC', 'meta')

    def __init__(self, text, tag=None, twin=False):
        self.text = text
        self.tag = tag
        self.twin = twin
        self.meta = None
        self.mf = 0
        self.wide = False
        self.dpp = False
        self.opsA = set()
        self.opsC = []
        t = text.split(';')[0].strip()
        if t.endswith(':'):
            self.op, self.kind, self.defs, self.uses = t, 'label', set(), set()
            return
        parts = t.split(None, 1)
        op = parts[0]
        self.op = op
        rest = parts[1] if len(parts) > 1 else ''
        ops, depth, cur = [], 0, ''
        for ch in rest:
            if ch in '[(':
                depth += 1
            if ch in '])':
                depth -= 1
            if ch == ',' and depth == 0:
                ops.append(cur.strip())
                cur = ''
            else:
                cur += ch
        if cur.strip():
            ops.append(cur.strip())
        mods = ''
        if ops:
            last = ops[-1].split(None, 1)
            ops[-1] = last[0]
            mods = last[1] if len(last) > 1 else ''
        R = [regs_of(o) for o in ops]
        flat = lambda l: set(x for r in l for x in r)
        d, u = set(), set()
        k = None
        base = re.sub(r'_(e32|e64|dpp|sdwa)$', '', op)
        if op.startswith('v_mfma'):
            k = 'mfma'
            d = set(R[0]); u = flat(R[1:])
            self.opsA = flat(R[1:3]); self.opsC = R[3]
            self.mf = 8 if '32x32' in op else 4
        elif op.startswith('v_'):
            k = 'trans' if base in TRANS else 'valu'
            if base.startswith('v_cmp'):
                d = set(R[0]); u = flat(R[1:])
            elif base.startswith('v_permlane') and 'swap' in base:
                d = flat(R[:2]); u = flat(R[:2]); k = 'perm'
            elif base in ('v_add_co_u32', 'v_sub_co_u32', 'v_addc_co_u32', 'v_subb_co_u32'):
                d = flat(R[:2]); u = flat(R[2:])
            elif base in ('v_fmac_f32', 'v_dot2c_f32_bf16', 'v_pk_fmac_f16', 'v_writelane_b32'):
                d = set(R[0]); u = flat(R)
            else:
                d = set(R[0]); u = flat(R[1:])
            if base == 'v_cndmask_b32' and len(ops) == 3:
                u.add('vcc')
            if base.startswith('v_dot2'):
                k = 'dot'
                self.opsA = flat(R[1:3])
            if op.endswith('_dpp') or 'row_' in mods or 'quad_perm' in mods:
                self.dpp = True
                if 'bound_ctrl' not in mods or 'row_mask:0xf' not in mods:
                    u |= set(R[0])
            if base in ('v_readfirstlane_b32', 'v_readlane_b32'):
                k = 'rdlane'
            u.add('exec')
        elif op.startswith('ds_read') or op.startswith('ds_bpermute') or op.startswith('ds_swizzle') or op.startswith('ds_permute'):
            k = 'ds_rd'; d = set(R[0]); u = flat(R[1:])
        elif op.startswith('ds_write') or op.startswith('ds_add'):
            k = 'ds_wr'; u = flat(R)
        elif op.startswith('buffer_load') or op.startswith('global_load'):
            if 'lds' in mods.split() or '_lds_' in op:
                k = 'dma'; u = flat(R) | {'m0'}
            else:
                k = 'vld'; d = set(R[0]); u = flat(R[1:])
        elif op.startswith('buffer_store') or op.startswith('global_store'):
            k = 'vst'; u = flat(R)
            self.wide = op.endswith('x4') or op.endswith('x3')
            self.opsA = set(R[0]) if op.startswith('buffer') else set(R[1])
        elif op.startswith('buffer_atomic') or op.startswith('global_atomic'):
            k = 'vst'; u = flat(R)
            if 'sc0' in mods.split():
                k = 'vld'; d = set(R[0])
        elif op in ('buffer_wbl2', 'buffer_inv'):
            k = 'vst'
        elif op.startswith('s_load') or op in ('s_memtime', 's_memrealtime'):
            k = 'smem'; d = set(R[0]); u = flat(R[1:])
        elif op == 's_waitcnt':
            k = 'wait'
        elif op == 's_nop':
            k = 'nop'
        elif op == 's_barrier':
            k = 'barrier'
        elif op.startswith('s_cbranch') or op == 's_branch':
            k = 'branch'
            if 'scc' in op: u = {'scc'}
            if 'vcc' in op: u = {'vcc'}
            if 'exec' in op: u = {'exec'}
        elif op in ('s_endpgm', 's_sleep', 's_setprio'):
            k = 'salu'
        elif op.startswith('s_cmp') or op.startswith('s_bitcmp'):
            k = 'salu'; u = flat(R); d = {'scc'}
        elif op.startswith('s_'):
            k = 'salu'; d = set(R[0]); u = flat(R[1:])
            if 'saveexec' in op:
                d |= {'exec', 'scc'}; u |= {'exec'}
            if op.startswith(('s_cselect', 's_addc', 's_subb')):
                u.add('scc')
            if op.startswith(('s_add', 's_sub', 's_and', 's_or', 's_xor', 's_lshl', 's_lshr', 's_ashr', 's_min', 's_max', 's_not', 's_bfe')):
                d.add('scc')
        elif op.startswith('WAIT'):
            k = 'pwait'
        else:
            raise ValueError('unknown op: ' + text)
        self.kind, self.defs, self.uses = k, d, u

    def is_valu(self):
        return self.kind in ('valu', 'trans', 'perm', 'dot', 'rdlane')

    def is_vmem(self):
        return self.kind in ('vld', 'vst', 'dma')


class Prog:
    def __init__(self):
        self.ins = []
        self.nlabel = 0

    def __call__(self, text, tag=None, twin=False):
        out = []
        for line in text.split('\n'):
            line = line.split(';')[0].strip()
            if not line:
                continue
            i = Ins(line, tag, twin)
            self.ins.append(i)
            out.append(i)
        return out

    def wait_vm(self, tag):
        i = Ins('WAITVM'); i.meta = ('vm', tag); self.ins.append(i)

    def wait_lgkm(self, tag):
        i = Ins('WAITLG'); i.meta = ('lg', tag); self.ins.append(i)

    def label(self, stem):
        self.nlabel += 1
        return f'L_{stem}_{self.nlabel}'

    def extend(self, other):
        self.ins.extend(other.ins if isinstance(other, Prog) else other)


def interleave(main, side, start=0, every=1, per=1):
    main = main.ins if isinstance(main, Prog) else main
    side = list(side.ins if isinstance(side, Prog) else side)
    out = []
    si = 0
    for n, i in enumerate(main):
        out.append(i)
        if n + 1 >= start and (n + 1 - start) % every == 0:
            for _ in range(per):
                if si < len(side):
                    out.append(side[si]); si += 1
    out.extend(side[si:])
    return out


def spread(main, side, lo=0, hi=None, is_slot=lambda i: True):
    main = main.ins if isinstance(main, Prog) else main
    side = list(side.ins if isinstance(side, Prog) else side)
    slots = [n for n, i in enumerate(main) if is_slot(i)]
    hi = len(slots) if hi is None else hi
    slots = slots[lo:hi]
    ns = len(slots)
    put = {}
    for k, s in enumerate(side):
        p = slots[min(ns - 1, k * ns // max(1, len(side)))]
        put.setdefault(p, []).append(s)
    out = []
    for n, i in enumerate(main):
        out.append(i)
        out.extend(put.get(n, []))
    return out


def insert_waits(ins):
    out = []
    vq = []
    lq = []

    def emit(vm=None, lg=None):
        s = 's_waitcnt'
        if vm is not None:
            vm = min(vm, 63)
            s += f' vmcnt({vm})'
            del vq[:max(0, len(vq) - vm)]
        if lg is not None:
            lg = min(lg, 15)
            s += f' lgkmcnt({lg})'
            del lq[:max(0, len(lq) - lg)]
        out.append(Ins(s))

    for i in ins:
        if i.kind == 'pwait':
            which, tag = i.meta
            q = vq if which == 'vm' else lq
            idx = [n for n, e in enumerate(q) if tag is None or e[1] == tag or (isinstance(tag, (tuple, list, set)) and e[1] in tag)]
            if idx:
                n = len(q) - 1 - max(idx)
                if which == 'vm':
                    emit(vm=n)
                else:
                    if any(e[2] for e in lq):
                        n = 0
                    emit(lg=n)
            continue
        if i.kind == 'wait':
            m = re.search(r'vmcnt\((\d+)\)', i.text)
            if m:
                del vq[:max(0, len(vq) - int(m.group(1)))]
            m = re.search(r'lgkmcnt\((\d+)\)', i.text)
            if m:
                n = int(m.group(1))
                if n == 0 or not any(e[2] for e in lq):
                    del lq[:max(0, len(lq) - n)]
            out.append(i)
            continue
        touched = i.uses | i.defs
        vi = [n for n, e in enumerate(vq) if e[0] & touched]
        li = [n for n, e in enumerate(lq) if e[0] & touched]
        vm = lg = None
        if vi:
            vm = len(vq) - 1 - max(vi)
        if li:
            lg = len(lq) - 1 - max(li)
            if any(e[2] for e in lq):
                lg = 0
        if vm is not None or lg is not None:
            emit(vm, lg)
        out.append(i)
        if i.kind == 'vld':
            vq.append((set(i.defs), i.tag))
        elif i.kind in ('vst', 'dma'):
            vq.append((set(), i.tag))
        elif i.kind == 'ds_rd':
            lq.append((set(i.defs), i.tag, False))
        elif i.kind == 'ds_wr':
            lq.append((set(), i.tag, False))
        elif i.kind == 'smem':
            lq.append((set(i.defs), i.tag, True))
    return out


def need_states(p, c):
    n = 0
    pv = {r for r in p.defs if r[0] in 'va' and r != 'vcc'}
    ps = {r for r in p.defs if r[0] == 's' and r != 'scc' or r == 'vcc'}
    cu, cd = c.uses, c.defs
    if p.is_valu():
        if pv & cu:
            if c.kind == 'mfma': n = max(n, 2)
            if c.kind == 'perm' or c.dpp: n = max(n, 2)
            if c.kind == 'rdlane': n = max(n, 1)
            if p.kind == 'trans' and c.is_valu(): n = max(n, 1)
        if p.kind == 'dot' and (pv & (cu | cd)) and (c.is_valu() or c.kind == 'mfma' or c.is_vmem() or c.kind == 'ds_wr'):
            if not (c.kind == 'dot' and c.op == p.op and not (pv & c.opsA)):
                n = max(n, 3)
        if ps & cu:
            if c.is_valu(): n = max(n, 4 if c.kind == 'rdlane' else 2)
            if c.is_vmem(): n = max(n, 5)
            if c.kind in ('salu', 'branch'): n = max(n, 1)
    if p.kind == 'mfma':
        big = p.mf == 8
        if c.kind == 'mfma':
            if pv & c.opsA: n = max(n, 12 if big else 8)
            oc = set(c.opsC)
            if pv & oc and not (oc == pv and c.mf == p.mf): n = max(n, 10 if big else 6)
            if pv & cd and not (pv & oc): n = max(n, 10 if big else 6)
        elif pv & (cu | cd):
            n = max(n, 12 if big else 8)
        if c.is_valu() and set(p.opsC) & cd:
            n = max(n, 7 if big else 3)
    if p.kind == 'vst' and p.wide and (p.opsA & cd):
        n = max(n, 2 if c.is_valu() else 1)
    if p.kind == 'salu' and 'm0' in p.defs and c.kind == 'dma':
        n = max(n, 1)
    return n


def insert_nops(ins):
    out = []
    hist = []
    for c in ins:
        if c.kind == 'label':
            out.append(c)
            continue
        need = 0
        dist = 0
        for p, st in reversed(hist):
            r = need_states(p, c) - dist
            if r > need:
                need = r
            dist += st
            if dist >= 20:
                break
        while need > 0:
            k = min(need, 16)
            nop = Ins(f's_nop {k - 1}')
            out.append(nop); hist.append((nop, k))
            need -= k
        out.append(c)
        st = 1
        if c.kind == 'nop':
            st = int(c.text.split()[1]) + 1
        hist.append((c, st))
        if len(hist) > 40:
            del hist[:10]
    return out


def expand_twins(ins, mode_sgpr, prefix):
    out, tail = [], []
    n = 0
    k = 0
    while k < len(ins):
        i = ins[k]
        if not i.twin:
            out.append(i); k += 1
            continue
        run = []
        while k < len(ins) and (ins[k].twin or (ins[k].kind in ('nop', 'wait') and k + 1 < len(ins) and ins[k + 1].twin)):
            run.append(ins[k]); k += 1
        n += 1
        out.append(Ins(f's_cmp_lg_u32 {mode_sgpr}, 0'))
        out.append(Ins(f's_cbranch_scc1 L_{prefix}_slow{n}'))
        out.extend(run)
        out.append(Ins(f'L_{prefix}_back{n}:'))
        tail.append(Ins(f'L_{prefix}_slow{n}:'))
        for r in run:
            tail.append(Ins(r.text + ' sc1') if (r.twin and r.kind == 'vst') else r)
        tail.append(Ins(f's_branch L_{prefix}_back{n}'))
    return out, tail


def render(ins):
    return '\n'.join((i.text if i.kind == 'label' else '    ' + i.text) for i in ins) + '\n'
```

```python
import sys, math, struct
sys.path.insert(0, 'work')
from asmlib import *

NAME = 'adaLN_cond__sliding_local_dilated__mixer_channel_mlp__prompt_kernel'

EPOCH, MODG, XCF, W2F = 0x0, 0x1000, 0x4000, 0x4800
FLG1, FLG2, FLG3 = 0x5000, 0x6000, 0x7000
STAMP = 0x8000 - 0x8000 + 0xE00000
MOM, OBUF, UG, H1, W2T = 0x10000, 0x100000, 0x300000, 0x500000, 0xC00000
SLOT = [0, 49152, 98304, 0]
LA = 65536
W2ST = 147456
RED = 155648
ONES = 156672
MT = 157696
W1B = 36864
CORR = 0
PART = 0
sC, sJ, sW, sTAG, sMODE = 's3', 's4', 's5', 's6', 's7'
SX, SWQ, SWO, SW1, SW2, SWM, SOUT, SWS = 8, 12, 16, 20, 24, 28, 32, 36
pC, pB1, pB2, pDBG = 40, 42, 44, 46
sB64, sQ8, sB128, sNQ = 's88', 's89', 's90', 's91'
T0, T1, T2, T3, T4, T5 = 's92', 's93', 's94', 's95', 's96', 's97'
sSPIN = 's100'


def S4(n): return f's[{n}:{n+3}]'
def S2(n): return f's[{n}:{n+1}]'
def V(n, k=1): return f'v{n}' if k == 1 else f'v[{n}:{n+k-1}]'
def A(n, k=1): return f'a{n}' if k == 1 else f'a[{n}:{n+k-1}]'
def fbits(x): return '0x%08x' % struct.unpack('<I', struct.pack('<f', x))[0]


class G:
    def __init__(self, stop=9, stamps=False, twin=False, spin=200000, ncode=2):
        self.p = Prog()
        self.stop, self.stamps, self.twin, self.spin, self.ncode = stop, stamps, twin, spin, ncode
        self.nst = 0
        self.tail = []

    def stamp(self, p=None):
        if not self.stamps:
            return
        p = p or self.p
        p(f's_memtime s[98:99]\nv_writelane_b32 v254, s98, {self.nst}')
        self.nst += 1

    def barrier(self, p=None):
        p = p or self.p
        p.wait_lgkm(None)
        p('s_barrier')

    def st(self, p, text, tag=None):
        if self.twin:
            p(text, tag=tag, twin=True)
        else:
            p(text + ' sc1', tag=tag)

    def poll(self, p, loads, checks, code):
        L = p.label('poll')
        p.wait_vm(None)
        p(f's_mov_b32 {sSPIN}, {self.spin}')
        p(f'{L}:')
        for l in loads:
            p(l)
        p(f's_sub_u32 {sSPIN}, {sSPIN}, 1')
        p(f's_cbranch_scc1 L_fail{code}')
        p('s_waitcnt vmcnt(0)')
        p(f'v_cmp_ne_u32 vcc, {sTAG}, {checks[0]}')
        for c in checks[1:]:
            p(f'v_cmp_ne_u32 s[98:99], {sTAG}, {c}')
            p('s_or_b64 vcc, vcc, s[98:99]')
        p(f's_cbranch_vccnz {L}')
        self.tail.append(f'L_fail{code}:\n    v_mov_b32 v10, {code}\n    s_branch L_fail')

    def unpack(self, p, dst, src, n):
        for d in range(n):
            p(f'v_lshlrev_b32 {V(dst+2*d)}, 16, {V(src+d)}')
            p(f'v_and_b32 {V(dst+2*d+1)}, 0xffff0000, {V(src+d)}')

    def entry(self):
        p = self.p
        p(f's_cmp_ge_u32 s2, 256\ns_cbranch_scc1 L_end')
        for srd, off in ((SWM, 72), (pC, 64), (SWS, 96), (SX, 0), (SWQ, 8), (SWO, 16), (SW1, 32), (SW2, 48),
                         (SOUT, 80), (pB1, 40), (pB2, 56), (pDBG, 88)):
            p(f's_load_dwordx2 {S2(srd)}, s[0:1], {off}')
        p('s_getpc_b64 s[92:93]')
        p('L_pc:')
        p('v_lshlrev_b32 v3, 7, v0')
        for n in range(self.ncode):
            if n:
                p('v_add_u32 v3, 0x8000, v3')
            p('v_min_u32 v4, L_end-L_pc, v3')
            p('global_load_dword v255, v4, s[92:93]')
        p('v_lshrrev_b32 v4, 6, v0')
        p('v_lshlrev_b32 v2, 4, v0')
        p(f'v_readfirstlane_b32 {sW}, v4')
        p('v_and_b32 v0, 63, v0')
        p('v_lshlrev_b32 v1, 4, v0')
        p(f's_and_b32 {sC}, s2, 7\ns_lshr_b32 {sJ}, s2, 3')
        for srd, size in ((SX, 2097152), (SWQ, 1572864), (SWO, 524288), (SW1, 1835008), (SOUT, 2097152), (SWS, 268435456)):
            p(f's_mov_b32 s{srd+2}, {size}\ns_mov_b32 s{srd+3}, 0x20000')
        p(f's_cmp_lt_u32 {sJ}, 24\ns_cselect_b32 s{SWM+2}, 3145728, 0\ns_mov_b32 s{SWM+3}, 0x20000')
        p(f's_cmp_lt_u32 {sJ}, 28\ns_cselect_b32 s{SW2+2}, 1835008, 0\ns_mov_b32 s{SW2+3}, 0x20000')
        p(f's_lshr_b32 {T2}, {sJ}, 3')
        p(f's_and_b32 {sQ8}, {sJ}, 7')
        p(f's_lshl_b32 {sB64}, {sC}, 2\ns_add_u32 {sB64}, {sB64}, {T2}')
        p(f's_lshr_b32 {sB128}, {sB64}, 1')
        p(f's_and_b32 {sNQ}, {sJ}, 15')
        p(f's_mov_b32 {sMODE}, 1')
        p(f's_lshl_b32 {T2}, {T2}, 6\ns_lshl_b32 {T3}, {sC}, 3\ns_add_u32 {T2}, {T2}, {T3}\ns_add_u32 s101, {T2}, {sQ8}')
        if self.stamps:
            p('v_mov_b32 v254, 0')

    def s0_loads(self):
        p = self.p
        CR, WR, EP = 216, 176, 218
        p(f'v_lshrrev_b32 v3, 1, v0\nv_lshlrev_b32 v3, 2, v3')
        p(f's_lshl_b32 {T3}, {sW}, 7')
        p(f'v_add_u32 v3, {T3}, v3')
        p('v_and_b32 v4, 1, v0\nv_lshlrev_b32 v4, 4, v4')
        p(f's_movk_i32 {T3}, 6144')
        p(f'v_mad_u32_u24 v4, v3, {T3}, v4')
        p('v_lshlrev_b32 v5, 1, v3')
        p(f's_lshl_b32 {T2}, s101, 5')
        self.stamp()
        p(f'global_load_dwordx2 {V(CR,2)}, v5, {S2(pC)}')
        for q in range(4):
            p(f'buffer_load_dwordx4 {V(WR+4*q,4)}, v4, {S4(SWM)}, {T2} offen')
            if q < 3:
                p(f's_add_u32 {T2}, {T2}, 6144')
        p(f'buffer_load_dword {V(EP)}, off, {S4(SWS)}, 0 sc1')
        p(f's_lshl_b32 {T2}, {sB64}, 16\ns_lshl_b32 {T3}, {sW}, 13\ns_add_u32 {T3}, {T2}, {T3}')
        p(f's_and_b32 {T4}, {sW}, 1\ns_lshl_b32 {T4}, {T4}, 3\ns_lshr_b32 {T5}, {sW}, 1\ns_add_u32 {T4}, {T4}, {T5}')
        p(f's_lshl_b32 {T4}, {T4}, 10\ns_add_u32 {T4}, {T4}, {T2}')
        p(f's_cmp_eq_u32 {sB64}, 0\ns_cselect_b32 {T5}, 0, 16384\ns_sub_u32 {T4}, {T4}, {T5}')
        p(f's_add_u32 {T5}, {T3}, 32768')
        p('v_add_u32 v6, 4096, v1')
        for tt in range(5):
            so = T4 if tt == 0 else (T3 if tt < 3 else T5)
            par = 0 if tt == 0 else (tt - 1) & 1
            for rr in range(4):
                q = tt * 4 + rr
                vo = 'v1' if rr < 2 else 'v6'
                p(f'buffer_load_dwordx4 {V(16+8*q+4,4)}, {vo}, {S4(SX)}, {so} offen offset:{(rr&1)*2048+par*1024}')
        p('v_lshrrev_b32 v9, 3, v0')
        p('v_bfe_u32 v10, v0, 4, 1')
        p('v_bfe_u32 v11, v0, 1, 2')
        p('v_xor_b32 v10, v10, v11')
        p('v_and_b32 v11, 1, v0\nv_lshlrev_b32 v11, 4, v11')
        p(f's_movk_i32 {T2}, 3072')
        p(f'v_mad_u32_u24 v11, v9, {T2}, v11')
        p(f's_mul_i32 {T2}, {sW}, 98304\ns_lshl_b32 {T3}, {sQ8}, 7\ns_add_u32 {T2}, {T2}, {T3}')
        p(f'v_add_u32 v11, {T2}, v11')
        p('v_lshl_add_u32 v7, v10, 5, v11')
        p('v_xor_b32 v10, 2, v10')
        p('v_lshl_add_u32 v8, v10, 5, v11')
        p(f'v_add_u32 v8, {8*3072-1024}, v8')
        p(f's_lshl_b32 s87, {sW}, 12')
        p(f's_mov_b32 {T0}, s87')
        for g in range(3):
            self.wq_dma(p, g)

    def wq_dma(self, p, g):
        for part in range(3):
            for h in range(2):
                p(f's_mov_b32 {T2}, {g*128*3072 + h*49152 + part*1024}')
                p(f's_add_u32 m0, {T0}, {SLOT[g] + part*16384 + h*2048}')
                p(f'buffer_load_dwordx4 v7, {S4(SWQ)}, {T2} offen lds', tag=f'G{g}')
                p(f'buffer_load_dwordx4 v8, {S4(SWQ)}, {T2} offen offset:1024 lds', tag=f'G{g}')

    def s0_mod(self):
        p = self.p
        CR, WR, EP = 216, 176, 218
        t = 220
        self.unpack(p, t, CR, 2)
        for q in range(4):
            p(f'v_mul_f32 {V(t+4+q)}, {fbits(-math.log2(math.e))}, {V(t+q)}')
        for q in range(4):
            p(f'v_exp_f32 {V(t+4+q)}, {V(t+4+q)}')
        for q in range(4):
            p(f'v_add_f32 {V(t+4+q)}, 1.0, {V(t+4+q)}')
        for q in range(4):
            p(f'v_rcp_f32 {V(t+4+q)}, {V(t+4+q)}')
        for q in range(4):
            p(f'v_mul_f32 {V(t+q)}, {V(t+q)}, {V(t+4+q)}')
        p(f'v_cvt_pk_bf16_f32 {V(t+4)}, {V(t)}, {V(t+1)}')
        p(f'v_cvt_pk_bf16_f32 {V(t+5)}, {V(t+2)}, {V(t+3)}')
        p(f's_mov_b32 {T2}, 0x05040100\ns_mov_b32 {T3}, 0x07060302')
        P, AC = 192, 228
        for pr in range(2):
            for d in range(4):
                p(f'v_perm_b32 {V(P+8*pr+2*d)}, {V(WR+8*pr+4+d)}, {V(WR+8*pr+d)}, {T2}')
                p(f'v_perm_b32 {V(P+8*pr+2*d+1)}, {V(WR+8*pr+4+d)}, {V(WR+8*pr+d)}, {T3}')
        for e in range(8):
            p(f'v_dot2_f32_bf16 {V(AC+e)}, {V(P+e)}, {V(t+4)}, 0')
        for e in range(8):
            p(f'v_dot2_f32_bf16 {V(AC+e)}, {V(P+8+e)}, {V(t+5)}, {V(AC+e)}')
        p(f'v_readfirstlane_b32 {sTAG}, {V(EP)}')
        for e in range(4):
            p(f'v_permlane32_swap_b32 {V(AC+e)}, {V(AC+e+4)}')
        for e in range(4):
            p(f'v_add_f32 {V(AC+e)}, {V(AC+e)}, {V(AC+e+4)}')
        p(f's_add_u32 {sTAG}, {sTAG}, 1')
        for e in range(2):
            p(f'v_permlane16_swap_b32 {V(AC+e)}, {V(AC+e+2)}')
        for e in range(2):
            p(f'v_add_f32 {V(AC+e)}, {V(AC+e)}, {V(AC+e+2)}')
        for sh in (8, 4, 2):
            for e in range(2):
                p(f'v_add_f32_dpp {V(AC+e)}, {V(AC+e)}, {V(AC+e)} row_ror:{sh} row_mask:0xf bank_mask:0xf')
        p('v_and_b32 v9, 1, v0\nv_lshlrev_b32 v9, 2, v9\nv_lshrrev_b32 v10, 4, v0\nv_add_u32 v9, v9, v10')
        p(f's_lshl_b32 {T2}, {sW}, 6\ns_add_u32 {T2}, {T2}, {RED}')
        p(f'v_lshl_add_u32 v9, v9, 3, {T2}')
        p(f'ds_write_b64 v9, {V(AC,2)}')
        p(f'v_lshrrev_b32 v10, 2, v2\nv_add_u32 v10, {ONES}, v10\nv_mov_b32 v11, 0x3f803f80')
        p('ds_write_b32 v10, v11')
        self.barrier()
        p(f'v_and_b32 v9, 7, v0\nv_lshlrev_b32 v9, 3, v9\nv_add_u32 v10, {RED}, v9')
        for w in range(4):
            p(f'ds_read_b64 {V(AC+2*w,2)}, v10 offset:{64*w}')
        p(f's_lshr_b32 {T2}, s101, 5\ns_cmp_eq_u32 {T2}, 1\ns_cselect_b32 {T3}, 1.0, 0')
        p(f's_cmp_eq_u32 {T2}, 4\ns_cselect_b32 {T3}, 1.0, {T3}')
        p(f'v_pk_add_f32 {V(AC,2)}, {V(AC,2)}, {V(AC+2,2)}')
        p(f'v_pk_add_f32 {V(AC+4,2)}, {V(AC+4,2)}, {V(AC+6,2)}')
        p(f'v_pk_add_f32 {V(AC,2)}, {V(AC,2)}, {V(AC+4,2)}')
        p(f'v_cvt_pk_bf16_f32 {V(AC+2)}, {V(AC)}, {V(AC+1)}')
        self.unpack(p, AC, AC + 2, 1)
        p(f'v_add_f32 {V(AC)}, {T3}, {V(AC)}\nv_add_f32 {V(AC+1)}, {T3}, {V(AC+1)}')
        p(f'v_cvt_pk_bf16_f32 {V(AC)}, {V(AC)}, {V(AC+1)}')
        p(f'v_mov_b32 {V(AC+1)}, {sTAG}')
        p(f's_lshl_b32 {T2}, s101, 6\ns_add_u32 {T2}, {T2}, {MODG}')
        p(f's_cmp_lt_u32 {sJ}, 24\ns_cselect_b32 {T3}, 0xff, 0\ns_cmp_eq_u32 {sW}, 0\ns_cselect_b32 exec_lo, {T3}, 0\ns_mov_b32 exec_hi, 0')
        p(f'buffer_store_dwordx2 {V(AC,2)}, v9, {S4(SWS)}, {T2} offen sc1')
        p(f's_getreg_b32 {T3}, hwreg(HW_REG_XCC_ID, 0, 4)')
        p(f's_cmp_eq_u32 {sW}, 1\ns_cselect_b32 exec_lo, 1, 0')
        p(f'v_mov_b32 {V(AC+2)}, {T3}\nv_mov_b32 {V(AC+3)}, {sTAG}')
        p(f's_lshl_b32 {T2}, {sC}, 5\ns_add_u32 {T2}, {T2}, {sJ}\ns_lshl_b32 {T2}, {T2}, 3\ns_add_u32 {T2}, {T2}, {XCF}')
        p(f'buffer_store_dwordx2 {V(AC+2,2)}, off, {S4(SWS)}, {T2} sc1')
        p('s_mov_b64 exec, -1')

    def s0_stats1(self):
        p = self.p
        S1, S2_ = 176, 196
        p('v_mov_b32 v9, 0x3f803f80')
        for q in range(20):
            raw = 16 + 8 * q + 4
            for d in range(4):
                c1 = '0' if d == 0 else V(S1 + q)
                c2 = '0' if d == 0 else V(S2_ + q)
                p(f'v_dot2_f32_bf16 {V(S1+q)}, {V(raw+d)}, v9, {c1}')
                p(f'v_dot2_f32_bf16 {V(S2_+q)}, {V(raw+d)}, {V(raw+d)}, {c2}')
        for q in range(20):
            self.unpack(p, 16 + 8 * q, 16 + 8 * q + 4, 4)

    def s0_stats2(self):
        p = self.p
        S1, S2_ = 176, 196
        for base in (S1, S2_):
            for tt in range(5):
                b = base + 4 * tt
                p(f'v_permlane32_swap_b32 {V(b)}, {V(b+2)}\nv_permlane32_swap_b32 {V(b+1)}, {V(b+3)}')
        for base in (S1, S2_):
            for tt in range(5):
                b = base + 4 * tt
                p(f'v_add_f32 {V(b)}, {V(b)}, {V(b+2)}\nv_add_f32 {V(b+1)}, {V(b+1)}, {V(b+3)}')
        regs = [base + 4 * tt for base in (S1, S2_) for tt in range(5)]
        for b in regs:
            p(f'v_permlane16_swap_b32 {V(b)}, {V(b+1)}')
        for b in regs:
            p(f'v_add_f32 {V(b)}, {V(b)}, {V(b+1)}')
        for sh in (8, 4, 2, 1):
            for b in regs:
                p(f'v_add_f32_dpp {V(b)}, {V(b)}, {V(b)} row_ror:{sh} row_mask:0xf bank_mask:0xf')
        p(f's_mov_b32 {T2}, {fbits(1/512)}\nv_mov_b32 v9, {fbits(1e-5)}')
        for tt in range(5):
            a, b = S1 + 4 * tt, S2_ + 4 * tt
            p(f'v_mul_f32 {V(a)}, {T2}, {V(a)}')
            p(f'v_fma_f32 {V(b)}, {V(b)}, {T2}, v9')
        for tt in range(5):
            a, b = S1 + 4 * tt, S2_ + 4 * tt
            p(f'v_fma_f32 {V(b)}, -{V(a)}, {V(a)}, {V(b)}')
        for tt in range(5):
            b = S2_ + 4 * tt
            p(f'v_rsq_f32 {V(b)}, {V(b)}')
        for tt in range(5):
            a, b = S1 + 4 * tt, S2_ + 4 * tt
            p(f'v_mul_f32 {V(a)}, -{V(a)}, {V(b)}')
        for q in range(20):
            tt, rr = divmod(q, 4)
            p(f'v_readlane_b32 s{48+2*q}, {V(S2_+4*tt)}, {16*rr}')
            p(f'v_readlane_b32 s{49+2*q}, {V(S1+4*tt)}, {16*rr}')
        for q in range(20):
            for d in range(4):
                r = V(16 + 8 * q + 2 * d, 2)
                p(f'v_pk_fma_f32 {r}, {r}, {S2(48+2*q)}, {S2(48+2*q)} op_sel:[0,0,1] op_sel_hi:[1,0,1]')

    def tr_addr_wq(self):
        p = self.p
        p('v_bfe_u32 v9, v0, 2, 2\nv_lshrrev_b32 v10, 4, v0')
        p('v_lshl_add_u32 v11, v10, 3, v9')
        p('v_lshrrev_b32 v9, 1, v9\nv_and_b32 v10, 1, v10\nv_lshl_or_b32 v9, v10, 1, v9')
        p(f'v_xor_b32 v9, {sW}, v9')
        p('v_lshlrev_b32 v11, 7, v11\nv_lshl_add_u32 v11, v9, 5, v11')
        p('v_and_b32 v9, 3, v0\nv_lshl_add_u32 v12, v9, 3, v11')
        p(f'v_add_u32 v13, {SLOT[1]}, v12\nv_add_u32 v14, {SLOT[2]}, v12')

    def wq_tr(self, g):
        p = self.p
        vb = {0: 'v12', 1: 'v13', 2: 'v14', 3: 'v12'}[g]
        for ss in range(4):
            for part in range(3):
                for e in range(2):
                    a = (part * 16 + 4 * g + ss) * 4 + 2 * e
                    p(f'ds_read_b64_tr_b16 {A(a,2)}, {vb} offset:{part*16384+ss*4096+e*512}')

    def w2_dma(self):
        p = self.p
        p('v_lshrrev_b32 v9, 3, v0\nv_and_b32 v10, 7, v0\nv_lshlrev_b32 v10, 4, v10\nv_lshl_add_u32 v9, v9, 10, v10')
        p('v_add_u32 v10, 7168, v9')
        p(f's_lshl_b32 {T2}, {sJ}, 2\ns_add_u32 {T2}, {T2}, {sW}')
        p(f's_lshl_b32 {T3}, {T2}, 14\ns_lshl_b32 {T4}, {sC}, 7\ns_add_u32 {T3}, {T3}, {T4}')
        p(f's_lshl_b32 {T4}, {sW}, 11\ns_add_u32 m0, {T4}, {W2ST}')
        p(f's_cmp_lt_u32 {sJ}, 28\ns_cselect_b32 {T3}, {T3}, 0')
        p(f'buffer_load_dwordx4 v9, {S4(SW2)}, {T3} offen lds', tag='G3')
        p(f'buffer_load_dwordx4 v10, {S4(SW2)}, {T3} offen offset:1024 lds', tag='G3')

    def w2_tr(self):
        p = self.p
        p('v_lshrrev_b32 v9, 5, v0\nv_bfe_u32 v10, v0, 2, 2\nv_lshl_add_u32 v9, v9, 3, v10\nv_lshlrev_b32 v9, 7, v9')
        p('v_bfe_u32 v10, v0, 4, 1\nv_lshl_add_u32 v9, v10, 5, v9\nv_and_b32 v10, 3, v0\nv_lshl_add_u32 v9, v10, 3, v9')
        p(f's_lshl_b32 {T4}, {sW}, 11\ns_add_u32 {T4}, {T4}, {W2ST}')
        p(f'v_add_u32 v9, {T4}, v9')
        for cb in range(2):
            for e in range(2):
                p(f'ds_read_b64_tr_b16 {V(240+4*cb+2*e,2)}, v9 offset:{64*cb+512*e}')

    def w2_store(self):
        p = self.p
        p(f's_mul_i32 {T2}, {sC}, 112\ns_lshl_b32 {T3}, {sJ}, 2\ns_add_u32 {T2}, {T2}, {T3}\ns_add_u32 {T2}, {T2}, {sW}')
        p(f's_lshl_b32 {T2}, {T2}, 11\ns_add_u32 {T2}, {T2}, {W2T}')
        p(f's_cmp_lt_u32 {sJ}, 28\ns_cselect_b32 {T3}, 0, 0x10000000\ns_cselect_b32 {T2}, {T2}, 0')
        p(f'v_add_u32 v9, {T3}, v1')
        for cb in range(2):
            p(f'buffer_store_dwordx4 {V(240+4*cb,4)}, v9, {S4(SWS)}, {T2} offen offset:{1024*cb} sc1')

    def mod_poll(self):
        p = self.p
        R = 216
        p(f's_mov_b32 {T2}, {MODG}\ns_mov_b32 {T3}, {MODG+4096}\ns_mov_b32 {T4}, {MODG+8192}')
        p(f's_lshl_b32 {T5}, {sC}, 8\ns_add_u32 {T5}, {T5}, {XCF}')
        p('v_and_b32 v9, 31, v0\nv_lshlrev_b32 v9, 3, v9')
        loads = [f'buffer_load_dwordx4 {V(R+4*n,4)}, v2, {S4(SWS)}, {s} offen sc1' for n, s in enumerate((T2, T3, T4))]
        loads.append(f'buffer_load_dwordx2 {V(R+12,2)}, v9, {S4(SWS)}, {T5} offen sc1')
        self.poll(p, loads, [V(R + 1 + 2 * k) for k in range(7)], 1)
        p(f'v_lshrrev_b32 v9, 1, v2\nv_add_u32 v9, {MT}, v9')
        for n in range(3):
            if n:
                p('v_add_u32 v9, 2048, v9')
            p(f'ds_write2_b32 v9, {V(R+4*n)}, {V(R+4*n+2)} offset0:0 offset1:1')
        if self.twin:
            p(f'v_readfirstlane_b32 {T2}, {V(R+12)}')
            p(f'v_cmp_ne_u32 vcc, {T2}, {V(R+12)}')
            p(f's_cmp_lg_u64 vcc, 0\ns_cselect_b32 {sMODE}, 1, 0')

    def wo_dma(self):
        p = self.p
        p('v_lshrrev_b32 v9, 3, v0\nv_bfe_u32 v10, v0, 4, 1\nv_lshlrev_b32 v10, 2, v10\nv_and_b32 v11, 7, v0\nv_xor_b32 v10, v10, v11')
        p('v_lshlrev_b32 v9, 10, v9\nv_lshl_add_u32 v9, v10, 4, v9')
        p('v_add_u32 v10, 7168, v9\nv_add_u32 v11, 7168, v10\nv_add_u32 v15, 7168, v11')
        p(f's_lshl_b32 {T2}, {sW}, 17\ns_lshl_b32 {T3}, {sQ8}, 7\ns_add_u32 {T2}, {T2}, {T3}')
        p(f's_lshl_b32 {T3}, {sW}, 14')
        for m in range(4):
            p(f's_add_u32 m0, {T3}, {4096*m}')
            for k, vv in enumerate(('v9', 'v10', 'v11', 'v15')):
                p(f'buffer_load_dwordx4 {vv}, {S4(SWO)}, {T2} offen offset:{1024*k} lds', tag='WO')
            if m < 3:
                p(f's_add_u32 {T2}, {T2}, 32768')

    def modulate(self):
        p = self.p
        GP, SP, Gf, Sf = 216, 220, 176, 184
        p(f'v_add_u32 v9, {MT}, v1')
        p(f'ds_read_b128 {V(SP,4)}, v9\nds_read_b128 {V(GP,4)}, v9 offset:1024')
        for rr in range(4):
            p(f's_lshl_b32 {T2}, {sW}, 2\ns_add_u32 {T2}, {T2}, {rr}')
            p(f's_lshl_b32 {T3}, {T2}, 10\ns_add_u32 {T3}, {T3}, {LA}')
            p(f'v_xor_b32 v{3+rr}, {T2}, v0\nv_lshl_add_u32 v{3+rr}, v{3+rr}, 4, {T3}')
        self.unpack(p, Gf, GP, 4)
        self.unpack(p, Sf, SP, 4)
        for q in range(20):
            tt, rr = divmod(q, 4)
            b = 16 + 8 * q
            for d in range(4):
                r = V(b + 2 * d, 2)
                p(f'v_pk_fma_f32 {r}, {r}, {V(Gf+2*d,2)}, {V(Sf+2*d,2)}')
            for d in range(4):
                p(f'v_cvt_pk_bf16_f32 {V(b+d)}, {V(b+2*d)}, {V(b+2*d+1)}')
            p(f'ds_write_b128 v{3+rr}, {V(b,4)} offset:{0 if tt == 0 else (tt-1)*16384}')
            if tt == 0:
                p(f'v_add_u32 v{3+rr}, 16384, v{3+rr}')

    def masks(self):
        p = self.p
        p('v_and_b32 v9, 15, v0\nv_lshrrev_b32 v10, 4, v0\nv_lshlrev_b32 v10, 2, v10')
        for r in range(4):
            p(f'v_add_u32 v11, {r}, v10')
            p('v_sub_u32 v15, v9, v11')
            p(f'v_cmp_ge_u32 {S2(48+2*r)}, 7, v15')
            p(f'v_cmp_ge_i32 {S2(56+2*r)}, -9, v15')
            p(f'v_cmp_gt_i32 {S2(64+2*r)}, 0, v15')
            p('v_cmp_ge_u32 vcc, 7, v11')
            p(f's_and_b64 {S2(64+2*r)}, {S2(64+2*r)}, vcc')
        p(f's_cmp_eq_u32 {sB64}, 0')
        for r in range(4):
            p(f's_cselect_b64 {S2(72+2*r)}, 0, {S2(56+2*r)}')
            p(f's_cselect_b64 {S2(64+2*r)}, 0, {S2(64+2*r)}')

    def p1_gemm(self):
        p = self.p
        p('v_and_b32 v9, 15, v0\nv_lshrrev_b32 v10, 4, v0')
        p(f'v_lshlrev_b32 v11, 10, v9\nv_add_u32 v11, {LA}, v11')
        for m in range(4):
            p(f'v_add_u32 v15, {4*m}, v10\nv_xor_b32 v15, v15, v9\nv_lshl_add_u32 v{3+m}, v15, 4, v11')
        RING, NR, PD = 16, 8, 6
        ACC = 48
        steps = [(tt, s) for tt in range(5) for s in range(16)]

        def rd(n):
            tt, s = steps[n]
            if (tt, s) == (1, 0):
                for m in range(4):
                    p(f'v_add_u32 v{3+m}, 16384, v{3+m}')
            off = (0 if tt == 0 else (tt - 1) * 16384) + (s >> 2) * 256
            p(f'ds_read_b128 {V(RING+4*(n%NR),4)}, v{3+(s&3)} offset:{off}')
        for n in range(PD):
            rd(n)
        for n, (tt, s) in enumerate(steps):
            if n + PD < len(steps):
                rd(n + PD)
            f = V(RING + 4 * (n % NR), 4)
            q, k, v = (V(ACC + 12 * tt + 4 * x, 4) for x in range(3))
            if tt:
                p(f'v_mfma_f32_16x16x32_bf16 {q}, {A((0*16+s)*4,4)}, {f}, {q if s else 0}')
            p(f'v_mfma_f32_16x16x32_bf16 {k}, {A((1*16+s)*4,4)}, {f}, {k if s else 0}')
            p(f'v_mfma_f32_16x16x32_bf16 {v}, {f}, {A((2*16+s)*4,4)}, {v if s else 0}')

    def w1_addr(self):
        p = self.p
        p(f's_movk_i32 {T2}, 4682\ns_movk_i32 {T3}, 3584\ns_mul_i32 {T4}, {sNQ}, 224')
        for q in range(7):
            p(f'v_add_u32 v9, {64*q}, v0')
            p(f'v_mul_u32_u24 v10, {T2}, v9\nv_lshrrev_b32 v10, 16, v10')
            p('v_mul_u32_u24 v11, 14, v10\nv_sub_u32 v9, v9, v11')
            p('v_and_b32 v11, 19, v10')
            p('v_bfe_u32 v15, v10, 2, 1\nv_lshl_or_b32 v11, v15, 3, v11')
            p('v_bfe_u32 v15, v10, 3, 1\nv_lshl_or_b32 v11, v15, 2, v11')
            p(f'v_lshlrev_b32 v9, 4, v9\nv_mad_u32_u24 v9, v11, {T3}, v9')
            p(f's_sub_u32 {T5}, {T4}, {1024*(q&3)}')
            p(f'v_add_u32 v{224+q}, {T5}, v9')

    def w1_dma(self, p, m, tag):
        p(f's_add_u32 {T2}, {sW}, {4*m}')
        p(f's_mul_i32 {T3}, {T2}, 7168\ns_mul_i32 {T2}, {T2}, 114688')
        p(f's_add_u32 m0, {T3}, {W1B}')
        for q in range(7):
            if q == 4:
                p(f's_add_u32 m0, {T3}, {W1B+4096}')
            p(f'buffer_load_dwordx4 v{224+q}, {S4(SW1)}, {T2} offen offset:{1024*(q&3)} lds', tag=tag)

    def wo_tr(self, p):
        p('v_bfe_u32 v9, v0, 2, 2\nv_lshrrev_b32 v10, 4, v0\nv_lshl_add_u32 v10, v10, 3, v9\nv_lshlrev_b32 v10, 7, v10')
        p('v_lshrrev_b32 v9, 1, v9\nv_lshlrev_b32 v9, 2, v9\nv_and_b32 v11, 3, v0\nv_or_b32 v9, v9, v11')
        p('v_lshl_add_u32 v12, v9, 4, v10\nv_xor_b32 v9, 4, v9\nv_lshl_add_u32 v13, v9, 4, v10')
        for s in range(16):
            for ct in range(4):
                for e in range(2):
                    p(f'ds_read_b64_tr_b16 {A((s*4+ct)*4+2*e,2)}, v{12+(ct>>1)} offset:{s*4096+e*512+8*(ct&1)}')

    def attention(self):
        p = self.p
        ACC = 48
        QP, KP, VP = 108, 116, 126
        vpos = {3: 0, 1: 2, 0: 4, 2: 6, 4: 8}
        ON, NEG = 136, 140
        SB, MX, PQ, OO, SU, OP = 144, 176, 184, 200, 232, 216
        for k in range(4):
            p(f'v_mov_b32 {V(ON+k)}, 0x3f803f80')
        p(f'v_mov_b32 {V(NEG)}, {fbits(-1e30)}')
        cs = fbits(0.25 * math.log2(math.e))
        p(f's_mov_b32 {T5}, {cs}')
        for tt in range(5):
            b = ACC + 12 * tt
            for h in range(2):
                if tt:
                    p(f'v_cvt_pk_bf16_f32 {V(QP+2*(tt-1)+h)}, {V(b+2*h)}, {V(b+2*h+1)}')
                p(f'v_cvt_pk_bf16_f32 {V(KP+2*tt+h)}, {V(b+4+2*h)}, {V(b+4+2*h+1)}')
                p(f'v_cvt_pk_bf16_f32 {V(VP+vpos[tt]+h)}, {V(b+8+2*h)}, {V(b+8+2*h+1)}')
        prev = {0: 0, 1: 0, 2: 1, 3: 2}
        for t in range(4):
            p(f'v_mfma_f32_16x16x16_bf16 {V(SB+8*t,4)}, {V(KP+2*(t+1),2)}, {V(QP+2*t,2)}, 0')
            p(f'v_mfma_f32_16x16x16_bf16 {V(SB+8*t+4,4)}, {V(KP+2*prev[t],2)}, {V(QP+2*t,2)}, 0')
        pm = {0: 64, 1: 72, 2: 56, 3: 56}
        for t in range(4):
            for r in range(4):
                p(f'v_cndmask_b32 {V(SB+8*t+r)}, {V(NEG)}, {V(SB+8*t+r)}, {S2(48+2*r)}')
                p(f'v_cndmask_b32 {V(SB+8*t+4+r)}, {V(NEG)}, {V(SB+8*t+4+r)}, {S2(pm[t]+2*r)}')
        for t in range(4):
            s = SB + 8 * t
            p(f'v_max3_f32 {V(MX+t)}, {V(s)}, {V(s+1)}, {V(s+2)}')
            p(f'v_max3_f32 {V(MX+4+t)}, {V(s+3)}, {V(s+4)}, {V(s+5)}')
        for t in range(4):
            s = SB + 8 * t
            p(f'v_max3_f32 {V(MX+t)}, {V(MX+t)}, {V(s+6)}, {V(s+7)}')
        for t in range(4):
            p(f'v_max_f32 {V(MX+t)}, {V(MX+t)}, {V(MX+4+t)}')
        for a in (0, 2):
            p(f'v_permlane32_swap_b32 {V(MX+a)}, {V(MX+a+1)}')
        for a in (0, 2):
            p(f'v_max_f32 {V(MX+a)}, {V(MX+a)}, {V(MX+a+1)}')
        for a in (0, 2):
            p(f'v_mov_b32 {V(MX+a+1)}, {V(MX+a)}')
        for a in (0, 2):
            p(f'v_permlane16_swap_b32 {V(MX+a)}, {V(MX+a+1)}')
        for a in (0, 2):
            p(f'v_max_f32 {V(MX+a)}, {V(MX+a)}, {V(MX+a+1)}')
        for a in (0, 2):
            p(f'v_mul_f32 {V(MX+a)}, {T5}, {V(MX+a)}')
        for a in (0, 2):
            p(f'v_mov_b32 {V(MX+a+1)}, {V(MX+a)}')
        for a in (0, 2):
            p(f'v_permlane32_swap_b32 {V(MX+a)}, {V(MX+a+1)}')
        p('v_and_b32 v9, 15, v0\nv_lshlrev_b32 v9, 4, v9\nv_lshrrev_b32 v10, 5, v0\nv_lshl_add_u32 v9, v10, 8, v9')
        p('v_bfe_u32 v10, v0, 4, 1\nv_lshl_add_u32 v9, v10, 3, v9')
        p(f's_lshl_b32 {T2}, {sB64}, 16\ns_lshl_b32 {T3}, {sQ8}, 11\ns_add_u32 {T2}, {T2}, {T3}')
        p(f's_lshl_b32 {T3}, {sW}, 9\ns_add_u32 {T2}, {T2}, {T3}\ns_add_u32 {T2}, {T2}, {OBUF}')
        for t in range(4):
            s = SB + 8 * t
            for r in range(8):
                p(f'v_fma_f32 {V(s+r)}, {V(s+r)}, {T5}, -{V(MX+t)}')
            for r in range(8):
                p(f'v_exp_f32 {V(s+r)}, {V(s+r)}')
            cur_first = t in (0, 2)
            for h in range(4):
                src = s + 2 * h if cur_first else s + (2 * h + 4) % 8
                p(f'v_cvt_pk_bf16_f32 {V(PQ+4*t+h)}, {V(src)}, {V(src+1)}')
        vq = {2: 0, 0: 2, 1: 4, 3: 6}
        for t in range(4):
            p(f'v_mfma_f32_16x16x32_bf16 {V(SU+4*t,4)}, {V(ON,4)}, {V(PQ+4*t,4)}, 0')
            p(f'v_mfma_f32_16x16x32_bf16 {V(OO+4*t,4)}, {V(VP+vq[t],4)}, {V(PQ+4*t,4)}, 0')
        for t in range(4):
            p(f'v_rcp_f32 {V(SU+4*t)}, {V(SU+4*t)}')
        for t in range(4):
            for h in range(2):
                r = V(OO + 4 * t + 2 * h, 2)
                p(f'v_pk_mul_f32 {r}, {r}, {V(SU+4*t,2)} op_sel_hi:[1,0]')
            for h in range(2):
                p(f'v_cvt_pk_bf16_f32 {V(OP+2*t+h)}, {V(OO+4*t+2*h)}, {V(OO+4*t+2*h+1)}')
        for t in range(4):
            if t:
                p(f's_add_u32 {T2}, {T2}, 16384')
            self.st(p, f'buffer_store_dwordx2 {V(OP+2*t,2)}, v9, {S4(SWS)}, {T2} offen')

    def flag(self, off_sgpr):
        p = self.p
        p.wait_vm(None)
        p(f'v_mov_b32 v9, {sTAG}')
        p('s_mov_b64 exec, 1')
        self.st(p, f'buffer_store_dword v9, off, {S4(SWS)}, {off_sgpr}')
        p('s_mov_b64 exec, -1')

    def row_off(self, p, vreg, sreg):
        p(f'v_and_b32 v9, 15, v0\nv_lshlrev_b32 v9, 11, v9\nv_lshrrev_b32 v10, 4, v0\nv_lshl_add_u32 {vreg}, v10, 4, v9')
        p(f's_lshr_b32 {T3}, {sW}, 1\ns_lshl_b32 {T3}, {T3}, 5\ns_and_b32 {T4}, {sW}, 1\ns_add_u32 {T3}, {T3}, {T4}')
        p(f's_lshl_b32 {T4}, {sB64}, 6\ns_add_u32 {T3}, {T3}, {T4}\ns_lshl_b32 {T3}, {T3}, 10')
        p(f's_lshl_b32 {T4}, {sQ8}, 7\ns_add_u32 {sreg}, {T3}, {T4}')

    def p2(self):
        p = self.p
        OF, AC, XR, XF, GAR, GAF, G2P, SBP, G2F, U, UGF, UP, MM = 16, 80, 96, 104, 120, 128, 144, 152, 160, 232, 176, 192, 200
        self.row_off(p, 'v3', T2)
        for hh in range(2):
            p(f'buffer_load_dwordx4 {V(XR+4*hh,4)}, v3, {S4(SX)}, {T2} offen offset:{64*hh}')
        p(f's_lshl_b32 {T2}, {sQ8}, 7\ns_add_u32 {T2}, {T2}, {MT}')
        p(f'v_lshrrev_b32 v9, 4, v0\nv_lshl_add_u32 v4, v9, 4, {T2}')
        for hh in range(2):
            p(f'ds_read_b128 {V(GAR+4*hh,4)}, v4 offset:{2*1024+64*hh}')
            p(f'ds_read_b128 {V(G2P+4*hh,4)}, v4 offset:{4*1024+64*hh}')
            p(f'ds_read_b128 {V(SBP+4*hh,4)}, v4 offset:{3*1024+64*hh}')
        self.barrier()
        self.unpack(p, GAF, GAR, 8)
        self.unpack(p, G2F, G2P, 8)
        self.unpack(p, XF, XR, 8)
        p('v_mov_b32 v8, 0x3f803f80')
        p(f's_lshl_b32 {T2}, {sB64}, 7\ns_add_u32 {T2}, {T2}, {FLG1}')
        p('v_and_b32 v9, 31, v0\nv_lshlrev_b32 v9, 2, v9')
        p(f's_lshl_b32 {T3}, {sB64}, 2\ns_add_u32 {T3}, {T3}, {sW}')
        p(f's_lshl_b32 {T4}, {T3}, 14\ns_add_u32 {T4}, {T4}, {OBUF}')
        self.stamp()
        self.poll(p, [f'buffer_load_dword v10, v9, {S4(SWS)}, {T2} offen sc1'], ['v10'], 2)
        self.stamp()
        for s in range(16):
            if s and s % 4 == 0:
                p(f's_add_u32 {T4}, {T4}, 4096')
            p(f'buffer_load_dwordx4 {V(OF+4*s,4)}, v1, {S4(SWS)}, {T4} offen offset:{1024*(s&3)} sc1')
        p(f's_mov_b32 {T5}, {T3}')
        self.w1_dma(p, 0, 'W1')
        for s in range(16):
            for ct in range(4):
                a = V(AC + 4 * ct, 4)
                p(f'v_mfma_f32_16x16x32_bf16 {a}, {A((s*4+ct)*4,4)}, {V(OF+4*s,4)}, {a if s else 0}')
        p(f's_lshl_b32 {T2}, {T5}, 14\ns_lshl_b32 {T3}, {sQ8}, 11\ns_add_u32 {T2}, {T2}, {T3}\ns_add_u32 {T2}, {T2}, {UG}')
        for k in range(8):
            p(f'v_pk_fma_f32 {V(XF+2*k,2)}, {V(AC+2*k,2)}, {V(GAF+2*k,2)}, {V(XF+2*k,2)}')
        for k in range(8):
            p(f'v_cvt_pk_bf16_f32 {V(U+k)}, {V(XF+2*k)}, {V(XF+2*k+1)}')
        self.unpack(p, XF, U, 8)
        for k in range(8):
            p(f'v_pk_mul_f32 {V(UGF+2*k,2)}, {V(XF+2*k,2)}, {V(G2F+2*k,2)}')
        for k in range(8):
            p(f'v_cvt_pk_bf16_f32 {V(UP+k)}, {V(UGF+2*k)}, {V(UGF+2*k+1)}')
        for hh in range(2):
            self.st(p, f'buffer_store_dwordx4 {V(UP+4*hh,4)}, v1, {S4(SWS)}, {T2} offen offset:{1024*hh}')
        for k in range(8):
            ops = [(U + k, 8), (U + k, U + k), (UP + k, 8), (UP + k, G2P + k), (UP + k, UP + k), (UP + k, SBP + k)]
            for m, (a, b) in enumerate(ops):
                p(f'v_dot2_f32_bf16 {V(MM+m)}, {V(a)}, {V(b)}, {V(MM+m) if k else 0}')
        p('v_and_b32 v9, 15, v0\nv_lshlrev_b32 v9, 5, v9\nv_lshrrev_b32 v10, 4, v0\nv_lshl_add_u32 v9, v10, 3, v9')
        p(f's_lshl_b32 {T2}, {T5}, 3\ns_add_u32 {T2}, {T2}, {sQ8}\ns_lshl_b32 {T2}, {T2}, 9\ns_add_u32 {T2}, {T2}, {MOM}')
        for m in (0, 2, 4):
            p(f'v_permlane32_swap_b32 {V(MM+m)}, {V(MM+m+1)}')
        for m in (0, 2, 4):
            p(f'v_add_f32 {V(MM+m)}, {V(MM+m)}, {V(MM+m+1)}')
        p(f'v_mov_b32 {V(MM+5)}, {V(MM+4)}')
        p(f'v_permlane16_swap_b32 {V(MM)}, {V(MM+2)}')
        p(f'v_permlane16_swap_b32 {V(MM+4)}, {V(MM+5)}')
        p(f'v_add_f32 {V(MM)}, {V(MM)}, {V(MM+2)}')
        p(f'v_add_f32 {V(MM+1)}, {V(MM+4)}, {V(MM+5)}')
        self.st(p, f'buffer_store_dwordx2 {V(MM,2)}, v9, {S4(SWS)}, {T2} offen')
        p(f's_lshl_b32 {T2}, {T5}, 3\ns_add_u32 {T2}, {T2}, {sQ8}\ns_lshl_b32 {T2}, {T2}, 2\ns_add_u32 {T2}, {T2}, {FLG2}')
        self.stamp()
        self.flag(T2)
        self.stamp()

    def w1_tr_addr(self):
        p = self.p
        p('v_lshrrev_b32 v9, 5, v0\nv_bfe_u32 v10, v0, 4, 1\nv_lshlrev_b32 v9, 4, v9\nv_lshl_add_u32 v9, v10, 2, v9')
        p('v_bfe_u32 v10, v0, 2, 2\nv_add_u32 v9, v9, v10')
        p(f's_movk_i32 {T2}, 224')
        p(f'v_and_b32 v10, 3, v0\nv_lshlrev_b32 v10, 3, v10\nv_mad_u32_u24 v9, v9, {T2}, v10')
        p(f'v_add_u32 v3, {W1B}, v9\nv_add_u32 v4, {W1B+57344}, v9')

    def gsc(self):
        p = self.p
        AS, BF, D0, DG, B1R, RR = 16, 224, 80, 88, 92, 96
        p(f's_mul_i32 {T2}, {sNQ}, 112\ns_lshl_b32 {T3}, {sW}, 4\ns_add_u32 {T2}, {T2}, {T3}')
        p(f'v_and_b32 v9, 15, v0\nv_add_u32 v9, {T2}, v9\nv_add_u32 v10, 64, v9\nv_min_u32 v10, 1791, v10')
        p('v_lshlrev_b32 v9, 1, v9\nv_lshlrev_b32 v10, 1, v10')
        p(f'global_load_ushort {V(B1R)}, v9, {S2(pB1)}\nglobal_load_ushort {V(B1R+1)}, v10, {S2(pB1)}')
        self.w1_tr_addr()
        p(f'v_and_b32 v9, 3, v0\nv_mov_b32 v10, {ONES}\nv_mov_b32 v11, {MT+4096}\nv_cmp_eq_u32 vcc, 0, v9\nv_cndmask_b32 v10, v10, v11, vcc')
        p(f'v_mov_b32 v11, {MT+3072}\nv_cmp_eq_u32 vcc, 1, v9\nv_cndmask_b32 v10, v10, v11, vcc')
        p('v_lshrrev_b32 v9, 4, v0\nv_lshl_add_u32 v5, v9, 4, v10')
        p(f's_lshl_b32 {T2}, {sW}, 5')
        p(f'v_add_u32 v6, {T2}, v3\nv_add_u32 v7, {T2}, v4')
        self.barrier()
        for s in range(16):
            p(f'ds_read_b128 {V(AS+4*s,4)}, v5 offset:{64*s}')

        def rd(s):
            for t in range(2):
                for e in range(2):
                    a = BF + 8 * (s & 3) + 4 * t + 2 * e
                    p(f'ds_read_b64_tr_b16 {A(a,2)}, v{6+(s>>3)} offset:{(s&7)*7168+e*1792+128*t}')
        for s in range(3):
            rd(s)
        for s in range(16):
            if s + 3 < 16:
                rd(s + 3)
            f = V(AS + 4 * s, 4)
            p(f'v_mfma_f32_16x16x32_bf16 {V(DG,4)}, {f}, {f}, {V(DG,4) if s else 0}')
            for t in range(2):
                d = V(D0 + 4 * t, 4)
                p(f'v_mfma_f32_16x16x32_bf16 {d}, {f}, {A(BF+8*(s&3)+4*t,4)}, {d if s else 0}')
        p('s_mov_b32 s60, 0xffff0000\ns_mov_b32 s61, 0xffff0000')
        p('s_mov_b32 s62, -1\ns_mov_b32 s63, 0\ns_mov_b32 s64, 0\ns_mov_b32 s65, -1')
        p(f's_lshl_b32 {T2}, {sW}, 10\ns_add_u32 {T2}, {T2}, {CORR}')
        p(f'v_add_u32 v9, {T2}, v1')
        for k in range(3):
            p(f'v_mul_f32 {V(DG+k)}, {fbits(1/512)}, {V(DG+k)}')
        for t in range(2):
            g_, s_, c_ = D0 + 4 * t, D0 + 4 * t + 1, D0 + 4 * t + 2
            r = RR + 4 * t
            t0 = 104 + 10 * t
            p(f'v_cvt_pk_bf16_f32 {V(r+1)}, {V(g_)}, {V(s_)}')
            p(f'v_cvt_pk_bf16_f32 {V(t0)}, {V(c_)}, {V(c_)}')
            p(f'v_lshlrev_b32 {V(t0+1)}, 16, {V(r+1)}')
            p(f'v_and_b32 {V(t0+2)}, 0xffff0000, {V(r+1)}')
            p(f'v_lshlrev_b32 {V(t0)}, 16, {V(t0)}')
            p(f'v_lshlrev_b32 {V(t0+3)}, 16, {V(B1R+t)}')
            p(f'v_sub_f32 {V(g_)}, {V(g_)}, {V(t0+1)}')
            p(f'v_sub_f32 {V(s_)}, {V(s_)}, {V(t0+2)}')
            p(f'v_sub_f32 {V(c_)}, {V(c_)}, {V(t0)}')
            p(f'v_cvt_pk_bf16_f32 {V(r)}, {V(t0+1)}, {V(g_)}')
            p(f'v_cvt_pk_bf16_f32 {V(r+2)}, {V(s_)}, {V(t0+2)}')
            p(f'v_cvt_pk_bf16_f32 {V(r+3)}, {V(t0)}, {V(c_)}')
            p(f'v_cvt_pk_bf16_f32 {V(t0+4)}, {V(t0)}, {V(t0+3)}')
            p(f'v_cndmask_b32 {V(r)}, {V(r)}, {V(t0+4)}, s[60:61]')
            p(f'v_cndmask_b32 {V(r+1)}, {V(r+1)}, {V(B1R+t)}, s[60:61]')
            p(f'v_cndmask_b32 {V(r+2)}, {V(r+2)}, 0, s[60:61]')
            p(f'v_cndmask_b32 {V(r+3)}, {V(r+3)}, 0, s[60:61]')
            p(f'ds_write_b128 v9, {V(r,4)} offset:{4096*t}')
        p(f'v_readlane_b32 s50, {V(DG)}, 0\nv_readlane_b32 s51, {V(DG+1)}, 0\nv_readlane_b32 s52, {V(DG+2)}, 0')
        p(f'v_readlane_b32 s53, {V(DG+1)}, 1\nv_readlane_b32 s54, {V(DG+2)}, 1')
        self.barrier()

    def p3_token(self, q):
        MR, t = 200, 200
        XA, XB, PA0, PA1, PIA = 208, 212, 240, 242, 244
        for par in range(2):
            for k in range(4):
                b = MR + 16 * par + 2 * k
                q(f'v_pk_add_f32 {V(b,2)}, {V(b,2)}, {V(b+8,2)}')
        slots = (0, 1, 2, 4, 5, 6)
        for sl in slots:
            q(f'v_permlane32_swap_b32 {V(MR+sl)}, {V(MR+16+sl)}')
        for sl in slots:
            q(f'v_add_f32 {V(MR+sl)}, {V(MR+sl)}, {V(MR+16+sl)}')
        for sl in slots:
            q(f'v_mov_b32 {V(MR+16+sl)}, {V(MR+sl)}')
        for sl in slots:
            q(f'v_permlane16_swap_b32 {V(MR+sl)}, {V(MR+16+sl)}')
        for sl in slots:
            q(f'v_add_f32 {V(MR+sl)}, {V(MR+sl)}, {V(MR+16+sl)}')
        q(f's_mov_b32 s55, {fbits(1/512)}')
        for sl in slots:
            q(f'v_mul_f32 {V(MR+sl)}, s55, {V(MR+sl)}')
        m0, m4, m2, m1, m5, m3 = (V(MR + sl) for sl in slots)
        w = [V(216 + k) for k in range(16)]
        q(f'v_mov_b32 {w[15]}, {fbits(1e-5)}')
        q(f'v_add_f32 {m1}, {m1}, {w[15]}')
        q(f'v_fma_f32 {w[0]}, -{m0}, {m0}, {m1}')
        q(f'v_rsq_f32 {w[1]}, {w[0]}')
        q(f'v_fma_f32 {m2}, -{m0}, s52, {m2}')
        q(f'v_mul_f32 {w[2]}, s50, {m0}')
        q(f'v_fma_f32 {w[2]}, -2.0, {m3}, {w[2]}')
        q(f'v_fma_f32 {w[2]}, {m0}, {w[2]}, {m4}')
        q(f'v_fma_f32 {m5}, -{m0}, s51, {m5}')
        q(f'v_mul_f32 {w[0]}, {w[0]}, {w[1]}')
        q(f'v_fma_f32 {m2}, {w[1]}, {m2}, s54')
        q(f'v_mul_f32 {w[2]}, {w[1]}, {w[2]}')
        q(f'v_fma_f32 {w[2]}, 2.0, {m5}, {w[2]}')
        q(f'v_fma_f32 {w[2]}, {w[1]}, {w[2]}, s53')
        q(f'v_add_f32 {w[2]}, {w[2]}, {w[15]}')
        q(f'v_fma_f32 {w[2]}, -{m2}, {m2}, {w[2]}')
        q(f'v_rsq_f32 {w[3]}, {w[2]}')
        q(f'v_mul_f32 {w[4]}, -{m2}, {w[0]}')
        q(f'v_sub_f32 {m0}, 0, {m0}')
        q(f'v_mul_f32 {w[2]}, {w[2]}, {w[3]}')
        q(f'v_mul_f32 {w[3]}, {w[1]}, {w[3]}')
        q(f'v_mul_f32 {V(PIA)}, {w[0]}, {w[2]}')
        c0 = -2 * math.sqrt(2 / math.pi) * math.log2(math.e)
        q(f'v_mul_f32 {V(PA0)}, {fbits(c0)}, {w[3]}')
        q(f'v_mul_f32 {w[5]}, {w[3]}, {w[3]}')
        q(f'v_mul_f32 {w[5]}, {fbits(0.044715)}, {w[5]}')
        q(f'v_mul_f32 {V(PA1)}, {w[5]}, {V(PA0)}')
        q(f'v_cvt_pk_bf16_f32 {w[6]}, {m0}, {w[0]}')
        q(f'v_cvt_pk_bf16_f32 {w[7]}, {w[4]}, {V(PIA)}')
        q(f'v_lshlrev_b32 {w[8]}, 16, {w[6]}')
        q(f'v_and_b32 {w[9]}, 0xffff0000, {w[6]}')
        q(f'v_lshlrev_b32 {w[10]}, 16, {w[7]}')
        q(f'v_and_b32 {w[11]}, 0xffff0000, {w[7]}')
        q(f'v_sub_f32 {m0}, {m0}, {w[8]}')
        q(f'v_sub_f32 {w[0]}, {w[0]}, {w[9]}')
        q(f'v_sub_f32 {w[4]}, {w[4]}, {w[10]}')
        q(f'v_sub_f32 {w[5]}, {V(PIA)}, {w[11]}')
        x = [V(MR + 1), V(MR + 2), V(MR + 3), V(MR + 4)]
        q(f'v_cvt_pk_bf16_f32 {x[0]}, {w[8]}, {w[8]}')
        q(f'v_cvt_pk_bf16_f32 {x[1]}, {m0}, {w[9]}')
        q(f'v_cvt_pk_bf16_f32 {x[2]}, {w[9]}, {w[0]}')
        q(f'v_cvt_pk_bf16_f32 {x[3]}, {w[10]}, {w[10]}')
        q(f'v_cvt_pk_bf16_f32 {w[12]}, {w[4]}, {w[11]}')
        q(f'v_cvt_pk_bf16_f32 {w[13]}, {w[5]}, 0')
        q(f'v_cndmask_b32 {x[0]}, {x[0]}, {w[12]}, s[60:61]')
        q(f'v_cndmask_b32 {x[1]}, {x[1]}, {w[13]}, s[60:61]')
        q(f'v_cndmask_b32 {x[2]}, {x[2]}, 0, s[60:61]')
        q(f'v_cndmask_b32 {x[3]}, {x[3]}, 0, s[60:61]')
        for k in range(4):
            q(f'v_cndmask_b32 {V(XA+k)}, 0, {x[k]}, s[62:63]')
            q(f'v_cndmask_b32 {V(XB+k)}, 0, {x[k]}, s[64:65]')
        for r in (PA0, PA1, PIA):
            q(f'v_mov_b32 {V(r+1)}, {V(r)}')
        for r in (PA0, PA1, PIA):
            q(f'v_permlane32_swap_b32 {V(r)}, {V(r+1)}')

    def p3(self):
        p = self.p
        UF, AC, MR = 16, 144, 200
        XA, XB, PA0, PA1, PIA = 208, 212, 240, 242, 244
        p(f's_lshl_b32 {T5}, {sB128}, 3\ns_lshl_b32 {T3}, {sW}, 1\ns_add_u32 {T5}, {T5}, {T3}')
        p(f's_lshl_b32 {T2}, {T5}, 5\ns_add_u32 {T2}, {T2}, {FLG2}\ns_mov_b32 {T3}, {W2F}')
        p('v_and_b32 v9, 15, v0\nv_lshlrev_b32 v5, 5, v9\nv_lshlrev_b32 v9, 2, v9\nv_lshrrev_b32 v10, 4, v0\nv_lshl_add_u32 v5, v10, 10, v5')
        self.stamp()
        self.poll(p, [f'buffer_load_dword v10, v9, {S4(SWS)}, {T2} offen sc1',
                      f'buffer_load_dwordx4 v[12:15], v1, {S4(SWS)}, {T3} offen sc1'], ['v10', 'v12', 'v13', 'v14', 'v15'], 3)
        self.stamp()
        p(f's_lshl_b32 {T2}, {T5}, 12\ns_add_u32 {T2}, {T2}, {MOM}\ns_add_u32 {T3}, {T2}, 4096')
        for par in range(2):
            for cqi in range(2):
                for h in range(2):
                    p(f'buffer_load_dwordx4 {V(MR+16*par+8*cqi+4*h,4)}, v5, {S4(SWS)}, {(T2,T3)[par]} offen offset:{512*cqi+16*h} sc1')
        p(f's_lshl_b32 {T2}, {T5}, 14\ns_add_u32 {T2}, {T2}, {UG}\ns_add_u32 {T3}, {T2}, 16384')
        for s in range(16):
            if s and s % 4 == 0:
                p(f's_add_u32 {T2}, {T2}, 4096\ns_add_u32 {T3}, {T3}, 4096')
            for par in range(2):
                p(f'buffer_load_dwordx4 {V(UF+8*s+4*par,4)}, v1, {S4(SWS)}, {(T2,T3)[par]} offen offset:{1024*(s&3)} sc1')
        p(f's_or_b32 {T2}, s2, {sW}\ns_cmp_eq_u32 {T2}, 0\ns_cselect_b32 exec_lo, 1, 0\ns_mov_b32 exec_hi, 0')
        p(f'v_mov_b32 v9, {sTAG}')
        p(f'buffer_store_dword v9, off, {S4(SWS)}, 0 sc1')
        p('s_mov_b64 exec, -1')
        side = Prog()
        side(f's_mul_i32 {T4}, {sQ8}, 112\ns_mul_i32 {T3}, {sW}, 28\ns_add_u32 {T4}, {T4}, {T3}\ns_lshl_b32 {T4}, {T4}, 11\ns_add_u32 {T4}, {T4}, {W2T}')
        for i in range(56):
            if i and i % 4 == 0:
                side(f's_add_u32 {T4}, {T4}, 4096')
            side(f'buffer_load_dwordx4 {A(4*i,4)}, v1, {S4(SWS)}, {T4} offen offset:{1024*(i&3)} sc1')
        main = Prog()
        NF = 112

        def rd(n):
            s, t = divmod(n, 7)
            for e in range(2):
                main(f'ds_read_b64_tr_b16 {A(224+4*(n%8)+2*e,2)}, v{3+(s>>3)} offset:{(s&7)*7168+e*1792+32*t}')
        pre = Prog()
        for n in range(7):
            s, t = divmod(n, 7)
            for e in range(2):
                pre(f'ds_read_b64_tr_b16 {A(224+4*(n%8)+2*e,2)}, v{3+(s>>3)} offset:{(s&7)*7168+e*1792+32*t}')
        p.extend(pre)
        self.p3_token(p)
        for n in range(NF):
            s, t = divmod(n, 7)
            for par in range(2):
                a = V(AC + 8 * t + 4 * par, 4)
                main(f'v_mfma_f32_16x16x32_bf16 {a}, {A(224+4*(n%8),4)}, {V(UF+8*s+4*par,4)}, {a if s else 0}')
            if n + 7 < NF:
                rd(n + 7)
        p.extend(spread(main, side, lo=20, hi=200, is_slot=lambda i: i.kind == 'mfma'))
        CO = 16
        p(f'v_add_u32 v9, {CORR}, v1')
        for t in range(7):
            p(f'ds_read_b128 {V(CO+4*t,4)}, v9 offset:{1024*t}')
        for t in range(7):
            for par in range(2):
                a = V(AC + 8 * t + 4 * par, 4)
                p(f'v_mfma_f32_16x16x32_bf16 {a}, {V(CO+4*t,4)}, {V((XA,XB)[par],4)}, {a}')
        self.stamp()
        p(f's_lshl_b32 {T2}, {sB128}, 2\ns_add_u32 {T2}, {T2}, {sW}\ns_mul_i32 {T2}, {T2}, 114688')
        p(f's_mul_i32 {T3}, {sNQ}, 7168\ns_add_u32 {T2}, {T2}, {T3}\ns_add_u32 {T2}, {T2}, {H1}')
        for t in range(7):
            tb = 48 + 8 * (t & 1)
            ob = 64 + 4 * (t % 4)
            pr = [(AC + 8 * t + 2 * k, tb + 2 * k, k >> 1) for k in range(4)]
            for a, x, par in pr:
                p(f'v_pk_mul_f32 {V(x,2)}, {V(a,2)}, {V(a,2)}')
            for a, x, par in pr:
                p(f'v_pk_fma_f32 {V(x,2)}, {V(x,2)}, {V(PA1,2)}, {V(PA0,2)} op_sel:[0,{par},{par}] op_sel_hi:[1,{par},{par}]')
            for a, x, par in pr:
                p(f'v_pk_mul_f32 {V(x,2)}, {V(x,2)}, {V(a,2)}')
            for k in range(8):
                p(f'v_exp_f32 {V(tb+k)}, {V(tb+k)}')
            for a, x, par in pr:
                p(f'v_pk_fma_f32 {V(x,2)}, {V(x,2)}, {V(PIA,2)}, {V(PIA,2)} op_sel:[0,{par},{par}] op_sel_hi:[1,{par},{par}]')
            for k in range(8):
                p(f'v_rcp_f32 {V(tb+k)}, {V(tb+k)}')
            for a, x, par in pr:
                p(f'v_pk_mul_f32 {V(x,2)}, {V(x,2)}, {V(a,2)}')
            for k in range(4):
                p(f'v_cvt_pk_bf16_f32 {V(ob+k)}, {V(tb+2*k)}, {V(tb+2*k+1)}')
            p(f'v_permlane16_swap_b32 {V(ob)}, {V(ob+2)}\nv_permlane16_swap_b32 {V(ob+1)}, {V(ob+3)}')
            if t == 4:
                p(f's_add_u32 {T2}, {T2}, 4096')
            self.st(p, f'buffer_store_dwordx4 {V(ob,4)}, v1, {S4(SWS)}, {T2} offen offset:{1024*(t&3)}')
        p(f's_lshl_b32 {T2}, {sB128}, 1\ns_lshr_b32 {T3}, {sW}, 1\ns_add_u32 {T2}, {T2}, {T3}\ns_lshl_b32 {T2}, {T2}, 4')
        p(f's_add_u32 {T2}, {T2}, {sNQ}\ns_lshl_b32 {T2}, {T2}, 1\ns_and_b32 {T3}, {sW}, 1\ns_add_u32 {T2}, {T2}, {T3}')
        p(f's_lshl_b32 {T2}, {T2}, 2\ns_add_u32 {T2}, {T2}, {FLG3}')
        self.stamp()
        self.flag(T2)
        self.stamp()

    def p4(self):
        p = self.p
        HR, NS = 16, 23
        B2R, GBR, U = 8, 240, 232
        acc = {(0, 0): V(200, 16), (0, 1): V(216, 16), (1, 0): A(224, 16), (1, 1): A(240, 16)}
        p(f's_lshl_b32 {T2}, {sQ8}, 7')
        p(f'v_lshrrev_b32 v3, 4, v0\nv_lshl_add_u32 v3, v3, 4, {T2}')
        for hh in range(2):
            p(f'global_load_dwordx4 {V(B2R+4*hh,4)}, v3, {S2(pB2)} offset:{64*hh}')
        p(f'v_add_u32 v3, {MT}, v3')
        for hh in range(2):
            p(f'ds_read_b128 {V(GBR+4*hh,4)}, v3 offset:{5*1024+64*hh}')
        self.barrier()
        p(f's_lshl_b32 {T2}, {sB64}, 7\ns_lshl_b32 {T3}, {sW}, 5\ns_add_u32 {T2}, {T2}, {T3}\ns_add_u32 {T2}, {T2}, {FLG3}')
        p('v_and_b32 v4, 7, v0\nv_lshlrev_b32 v4, 2, v4')
        p(f's_mul_i32 {T4}, {sB64}, 229376\ns_mul_i32 {T3}, {sW}, 28672\ns_add_u32 {T4}, {T4}, {T3}\ns_add_u32 {T4}, {T4}, {H1}')
        p(f's_add_u32 {T5}, {T4}, 114688')
        self.stamp()
        self.poll(p, [f'buffer_load_dword v5, v4, {S4(SWS)}, {T2} offen sc1'], ['v5'], 4)
        self.stamp()

        def ld(ks):
            if ks and ks % 4 == 0:
                p(f's_add_u32 {T4}, {T4}, 4096\ns_add_u32 {T5}, {T5}, 4096')
            for rb in range(2):
                p(f'buffer_load_dwordx4 {V(HR+8*(ks%NS)+4*rb,4)}, v1, {S4(SWS)}, {(T4,T5)[rb]} offen offset:{1024*(ks&3)} sc1')
        for ks in range(NS):
            ld(ks)
        for ks in range(28):
            for rb in range(2):
                for cb in range(2):
                    a = acc[(rb, cb)]
                    p(f'v_mfma_f32_32x32x16_bf16 {a}, {A(8*ks+4*cb,4)}, {V(HR+8*(ks%NS)+4*rb,4)}, {a if ks else 0}')
            if ks + NS < 28:
                ld(ks + NS)
        self.stamp()
        WA = 16
        p('v_and_b32 v3, 31, v0\nv_lshlrev_b32 v3, 8, v3\nv_and_b32 v4, 15, v0\nv_lshrrev_b32 v5, 5, v0\nv_xor_b32 v4, v4, v5')
        p(f's_lshl_b32 {T2}, {sW}, 14\ns_add_u32 {T2}, {T2}, {PART}')
        p(f'v_add_u32 v3, {T2}, v3')
        for k in range(8):
            p(f'v_xor_b32 v5, {2*k}, v4\nv_lshl_add_u32 {V(WA+k)}, v5, 4, v3')
        for rb in range(2):
            for cb in range(2):
                base = {(0, 0): ('v', 200), (0, 1): ('v', 216), (1, 0): ('a', 224), (1, 1): ('a', 240)}[(rb, cb)]
                for q4 in range(4):
                    r = (V if base[0] == 'v' else A)(base[1] + 4 * q4, 4)
                    p(f'ds_write_b128 {V(WA+4*cb+q4)}, {r} offset:{8192*rb}')
        RA = 24
        p(f'v_and_b32 v3, 15, v0\nv_lshrrev_b32 v4, 4, v0\nv_lshlrev_b32 v4, 1, v4\nv_xor_b32 v4, v4, v3')
        p(f's_lshl_b32 {T2}, {sW}, 12\ns_add_u32 {T2}, {T2}, {PART}')
        p(f'v_lshl_add_u32 v3, v3, 8, {T2}')
        for k in range(4):
            p(f'v_xor_b32 v5, {8*(k>>1)+(k&1)}, v4\nv_lshl_add_u32 {V(RA+k)}, v5, 4, v3')
        XF, GF, BF, PS = 96, 112, 128, 32
        self.unpack(p, XF, U, 8)
        self.unpack(p, GF, GBR, 8)
        self.unpack(p, BF, B2R, 8)
        self.row_off(p, 'v3', T2)
        self.barrier()
        for w in range(4):
            for k in range(4):
                p(f'ds_read_b128 {V(PS+16*w+4*k,4)}, {V(RA+k)} offset:{16384*w}')
        for w in range(4):
            for k in range(8):
                p(f'v_pk_add_f32 {V(BF+2*k,2)}, {V(BF+2*k,2)}, {V(PS+16*w+2*k,2)}')
        for k in range(8):
            p(f'v_pk_fma_f32 {V(XF+2*k,2)}, {V(BF+2*k,2)}, {V(GF+2*k,2)}, {V(XF+2*k,2)}')
        for k in range(8):
            p(f'v_cvt_pk_bf16_f32 {V(GF+k)}, {V(XF+2*k)}, {V(XF+2*k+1)}')
        for hh in range(2):
            p(f'buffer_store_dwordx4 {V(GF+4*hh,4)}, v3, {S4(SOUT)}, {T2} offen offset:{64*hh}')

    def finish(self):
        p = self.p
        if self.stamps:
            self.stamp()
            p(f's_lshl_b32 {T2}, s2, 2\ns_add_u32 {T2}, {T2}, {sW}\ns_lshl_b32 {T2}, {T2}, 8\ns_add_u32 {T2}, {T2}, {STAMP}')
            p('v_lshlrev_b32 v9, 2, v0')
            p(f'buffer_store_dword v254, v9, {S4(SWS)}, {T2} offen')
        p('s_waitcnt vmcnt(0) lgkmcnt(0)')
        p('s_endpgm')

    def build(self):
        p = self.p
        self.entry()
        self.s0_loads()
        self.s0_mod()
        self.stamp()
        self.s0_stats1()
        self.tr_addr_wq()
        p.wait_vm('G0'); self.barrier(); self.stamp()
        self.wq_tr(0)
        self.barrier()
        self.wq_dma(p, 3)
        self.w2_dma()
        self.s0_stats2()
        self.stamp()
        p.wait_vm('G1'); self.barrier()
        self.wq_tr(1)
        p.wait_vm('G2'); self.barrier()
        self.wq_tr(2)
        p.wait_vm('G3'); self.barrier(); self.stamp()
        self.wq_tr(3)
        self.w2_tr()
        self.mod_poll()
        self.barrier(); self.stamp()
        self.w2_store()
        self.wo_dma()
        self.modulate()
        self.masks()
        self.w1_addr()
        self.barrier(); self.stamp()
        self.p1_gemm()
        p.wait_vm(None); self.barrier(); self.stamp()
        p(f's_lshl_b32 {T2}, s2, 2\ns_add_u32 {T2}, {T2}, {W2F}')
        p(f's_cmp_eq_u32 {sW}, 0\ns_cselect_b32 exec_lo, 1, 0\ns_mov_b32 exec_hi, 0')
        p(f'v_mov_b32 v9, {sTAG}')
        p(f'buffer_store_dword v9, off, {S4(SWS)}, {T2} sc1')
        p('s_mov_b64 exec, -1')
        for m in range(1, 4):
            self.w1_dma(p, m, 'W1')
        self.wo_tr(p)
        self.attention()
        p(f's_lshl_b32 {T2}, {sB64}, 3\ns_add_u32 {T2}, {T2}, {sQ8}\ns_lshl_b32 {T2}, {T2}, 2\ns_add_u32 {T2}, {T2}, {sW}')
        p(f's_lshl_b32 {T2}, {T2}, 2\ns_add_u32 {T2}, {T2}, {FLG1}')
        self.stamp()
        self.flag(T2)
        if self.stop > 1:
            self.p2()
        if self.stop > 2:
            self.gsc()
            self.p3()
        if self.stop > 3:
            self.p4()
        self.finish()
        ins = insert_waits(p.ins)
        ins = insert_nops(ins)
        tail = []
        if self.twin:
            ins, tail = expand_twins(ins, sMODE, 'tw')
        body = render(ins) + render(tail)
        body += '\n'.join(self.tail) + '\n'
        body += f'''L_fail:
    s_mov_b64 exec, 1
    v_lshlrev_b32 v11, 2, v10
    v_mov_b32 v12, s2
    v_add_u32 v12, 1, v12
    global_store_dword v11, v12, {S2(pDBG)}
    s_waitcnt vmcnt(0)
L_end:
    s_endpgm
'''
        return body


HEAD = open('adaLN_cond__sliding_local_dilated__mixer_channel_mlp__prompt.s.ref').read().split('; Override')[0]


def full(**kw):
    g = G(**kw)
    body = g.build()
    return (HEAD + '; @launch grid=(256,1,1) block=(256,1,1) lds=163840\n'
            '.amdgcn_target "amdgcn-amd-amdhsa--gfx950"\n.text\n'
            f'.globl {NAME}\n.p2align 8\n.type {NAME},@function\n{NAME}:\n' + body +
            f'''.section .rodata,"a"
.p2align 6
.amdhsa_kernel {NAME}
  .amdhsa_next_free_vgpr 512
  .amdhsa_next_free_sgpr 102
  .amdhsa_accum_offset 256
  .amdhsa_group_segment_fixed_size 0
  .amdhsa_kernarg_size 104
  .amdhsa_user_sgpr_count 2
  .amdhsa_user_sgpr_kernarg_segment_ptr 1
  .amdhsa_system_sgpr_workgroup_id_x 1
.end_amdhsa_kernel
''')


if __name__ == '__main__':
    import argparse
    ap = argparse.ArgumentParser()
    ap.add_argument('-o', default='k.s')
    ap.add_argument('--stop', type=int, default=9)
    ap.add_argument('--stamps', action='store_true')
    ap.add_argument('--twin', action='store_true')
    a = ap.parse_args()
    open(a.o, 'w').write(full(stop=a.stop, stamps=a.stamps, twin=a.twin))
```

```python
import sys, math, struct
sys.path.insert(0, 'work')
from asmlib import *

NAME = 'adaLN_cond__sliding_local_dilated__mixer_channel_mlp__prompt_kernel'

EPOCH, MODG, XCF, W2F = 0x0, 0x1000, 0x4000, 0x4800
FLG1, FLG2, FLG3 = 0x5000, 0x6000, 0x7000
STAMP = 0x8000 - 0x8000 + 0xE00000
MOM, OBUF, UG, H1, W2T = 0x10000, 0x100000, 0x300000, 0x500000, 0xC00000
SLOT = [0, 49152, 98304, 0]
LA = 65536
W2ST = 147456
RED = 155648
ONES = 156672
MT = 157696
W1B = 36864
CORR = 0
PART = 0
sC, sJ, sW, sTAG, sMODE = 's3', 's4', 's5', 's6', 's7'
SX, SWQ, SWO, SW1, SW2, SWM, SOUT, SWS = 8, 12, 16, 20, 24, 28, 32, 36
pC, pB1, pB2, pDBG = 40, 42, 44, 46
sB64, sQ8, sB128, sNQ = 's88', 's89', 's90', 's91'
T0, T1, T2, T3, T4, T5 = 's92', 's93', 's94', 's95', 's96', 's97'
sSPIN = 's100'


def S4(n): return f's[{n}:{n+3}]'
def S2(n): return f's[{n}:{n+1}]'
def V(n, k=1): return f'v{n}' if k == 1 else f'v[{n}:{n+k-1}]'
def A(n, k=1): return f'a{n}' if k == 1 else f'a[{n}:{n+k-1}]'
def fbits(x): return '0x%08x' % struct.unpack('<I', struct.pack('<f', x))[0]


class G:
    def __init__(self, stop=9, stamps=False, twin=False, spin=200000, ncode=2):
        self.p = Prog()
        self.stop, self.stamps, self.twin, self.spin, self.ncode = stop, stamps, twin, spin, ncode
        self.nst = 0
        self.tail = []

    def stamp(self, p=None):
        if not self.stamps:
            return
        p = p or self.p
        p(f's_memtime s[98:99]\nv_writelane_b32 v254, s98, {self.nst}')
        self.nst += 1

    def barrier(self, p=None):
        p = p or self.p
        p.wait_lgkm(None)
        p('s_barrier')

    def st(self, p, text, tag=None):
        if self.twin:
            p(text, tag=tag, twin=True)
        else:
            p(text + ' sc1', tag=tag)

    def poll(self, p, loads, checks, code):
        L = p.label('poll')
        p.wait_vm(None)
        p(f's_mov_b32 {sSPIN}, {self.spin}')
        p(f'{L}:')
        for l in loads:
            p(l)
        p(f's_sub_u32 {sSPIN}, {sSPIN}, 1')
        p(f's_cbranch_scc1 L_fail{code}')
        p('s_waitcnt vmcnt(0)')
        p(f'v_cmp_ne_u32 vcc, {sTAG}, {checks[0]}')
        for c in checks[1:]:
            p(f'v_cmp_ne_u32 s[98:99], {sTAG}, {c}')
            p('s_or_b64 vcc, vcc, s[98:99]')
        p(f's_cbranch_vccnz {L}')
        self.tail.append(f'L_fail{code}:\n    v_mov_b32 v10, {code}\n    s_branch L_fail')

    def unpack(self, p, dst, src, n):
        for d in range(n):
            p(f'v_lshlrev_b32 {V(dst+2*d)}, 16, {V(src+d)}')
            p(f'v_and_b32 {V(dst+2*d+1)}, 0xffff0000, {V(src+d)}')

    def entry(self):
        p = self.p
        p(f's_cmp_ge_u32 s2, 256\ns_cbranch_scc1 L_end')
        for srd, off in ((SWM, 72), (pC, 64), (SWS, 96), (SX, 0), (SWQ, 8), (SWO, 16), (SW1, 32), (SW2, 48),
                         (SOUT, 80), (pB1, 40), (pB2, 56), (pDBG, 88)):
            p(f's_load_dwordx2 {S2(srd)}, s[0:1], {off}')
        p('s_getpc_b64 s[92:93]')
        p('L_pc:')
        p('v_lshlrev_b32 v3, 7, v0')
        for n in range(self.ncode):
            if n:
                p('v_add_u32 v3, 0x8000, v3')
            p('v_min_u32 v4, L_end-L_pc, v3')
            p('global_load_dword v255, v4, s[92:93]')
        p('v_lshrrev_b32 v4, 6, v0')
        p('v_lshlrev_b32 v2, 4, v0')
        p(f'v_readfirstlane_b32 {sW}, v4')
        p('v_and_b32 v0, 63, v0')
        p('v_lshlrev_b32 v1, 4, v0')
        p(f's_and_b32 {sC}, s2, 7\ns_lshr_b32 {sJ}, s2, 3')
        for srd, size in ((SX, 2097152), (SWQ, 1572864), (SWO, 524288), (SW1, 1835008), (SOUT, 2097152), (SWS, 268435456)):
            p(f's_mov_b32 s{srd+2}, {size}\ns_mov_b32 s{srd+3}, 0x20000')
        p(f's_cmp_lt_u32 {sJ}, 24\ns_cselect_b32 s{SWM+2}, 3145728, 0\ns_mov_b32 s{SWM+3}, 0x20000')
        p(f's_cmp_lt_u32 {sJ}, 28\ns_cselect_b32 s{SW2+2}, 1835008, 0\ns_mov_b32 s{SW2+3}, 0x20000')
        p(f's_lshr_b32 {T2}, {sJ}, 3')
        p(f's_and_b32 {sQ8}, {sJ}, 7')
        p(f's_lshl_b32 {sB64}, {sC}, 2\ns_add_u32 {sB64}, {sB64}, {T2}')
        p(f's_lshr_b32 {sB128}, {sB64}, 1')
        p(f's_and_b32 {sNQ}, {sJ}, 15')
        p(f's_mov_b32 {sMODE}, 1')
        p(f's_lshl_b32 {T2}, {T2}, 6\ns_lshl_b32 {T3}, {sC}, 3\ns_add_u32 {T2}, {T2}, {T3}\ns_add_u32 s101, {T2}, {sQ8}')
        if self.stamps:
            p('v_mov_b32 v254, 0')

    def s0_loads(self):
        p = self.p
        CR, WR, EP = 216, 176, 218
        p(f'v_lshrrev_b32 v3, 1, v0\nv_lshlrev_b32 v3, 2, v3')
        p(f's_lshl_b32 {T3}, {sW}, 7')
        p(f'v_add_u32 v3, {T3}, v3')
        p('v_and_b32 v4, 1, v0\nv_lshlrev_b32 v4, 4, v4')
        p(f's_movk_i32 {T3}, 6144')
        p(f'v_mad_u32_u24 v4, v3, {T3}, v4')
        p('v_lshlrev_b32 v5, 1, v3')
        p(f's_lshl_b32 {T2}, s101, 5')
        self.stamp()
        p(f'global_load_dwordx2 {V(CR,2)}, v5, {S2(pC)}')
        for q in range(4):
            p(f'buffer_load_dwordx4 {V(WR+4*q,4)}, v4, {S4(SWM)}, {T2} offen')
            if q < 3:
                p(f's_add_u32 {T2}, {T2}, 6144')
        p(f'buffer_load_dword {V(EP)}, off, {S4(SWS)}, 0 sc1')
        p(f's_lshl_b32 {T2}, {sB64}, 16\ns_lshl_b32 {T3}, {sW}, 13\ns_add_u32 {T3}, {T2}, {T3}')
        p(f's_and_b32 {T4}, {sW}, 1\ns_lshl_b32 {T4}, {T4}, 3\ns_lshr_b32 {T5}, {sW}, 1\ns_add_u32 {T4}, {T4}, {T5}')
        p(f's_lshl_b32 {T4}, {T4}, 10\ns_add_u32 {T4}, {T4}, {T2}')
        p(f's_cmp_eq_u32 {sB64}, 0\ns_cselect_b32 {T5}, 0, 16384\ns_sub_u32 {T4}, {T4}, {T5}')
        p(f's_add_u32 {T5}, {T3}, 32768')
        p('v_add_u32 v6, 4096, v1')
        for tt in range(5):
            so = T4 if tt == 0 else (T3 if tt < 3 else T5)
            par = 0 if tt == 0 else (tt - 1) & 1
            for rr in range(4):
                q = tt * 4 + rr
                vo = 'v1' if rr < 2 else 'v6'
                p(f'buffer_load_dwordx4 {V(16+8*q+4,4)}, {vo}, {S4(SX)}, {so} offen offset:{(rr&1)*2048+par*1024}')
        p('v_lshrrev_b32 v9, 3, v0')
        p('v_bfe_u32 v10, v0, 4, 1')
        p('v_bfe_u32 v11, v0, 1, 2')
        p('v_xor_b32 v10, v10, v11')
        p('v_and_b32 v11, 1, v0\nv_lshlrev_b32 v11, 4, v11')
        p(f's_movk_i32 {T2}, 3072')
        p(f'v_mad_u32_u24 v11, v9, {T2}, v11')
        p(f's_mul_i32 {T2}, {sW}, 98304\ns_lshl_b32 {T3}, {sQ8}, 7\ns_add_u32 {T2}, {T2}, {T3}')
        p(f'v_add_u32 v11, {T2}, v11')
        p('v_lshl_add_u32 v7, v10, 5, v11')
        p('v_xor_b32 v10, 2, v10')
        p('v_lshl_add_u32 v8, v10, 5, v11')
        p(f'v_add_u32 v8, {8*3072-1024}, v8')
        p(f's_lshl_b32 s87, {sW}, 12')
        p(f's_mov_b32 {T0}, s87')
        for g in range(3):
            self.wq_dma(p, g)

    def wq_dma(self, p, g):
        for part in range(3):
            for h in range(2):
                p(f's_mov_b32 {T2}, {g*128*3072 + h*49152 + part*1024}')
                p(f's_add_u32 m0, {T0}, {SLOT[g] + part*16384 + h*2048}')
                p(f'buffer_load_dwordx4 v7, {S4(SWQ)}, {T2} offen lds', tag=f'G{g}')
                p(f'buffer_load_dwordx4 v8, {S4(SWQ)}, {T2} offen offset:1024 lds', tag=f'G{g}')

    def s0_mod(self):
        p = self.p
        CR, WR, EP = 216, 176, 218
        t = 220
        self.unpack(p, t, CR, 2)
        for q in range(4):
            p(f'v_mul_f32 {V(t+4+q)}, {fbits(-math.log2(math.e))}, {V(t+q)}')
        for q in range(4):
            p(f'v_exp_f32 {V(t+4+q)}, {V(t+4+q)}')
        for q in range(4):
            p(f'v_add_f32 {V(t+4+q)}, 1.0, {V(t+4+q)}')
        for q in range(4):
            p(f'v_rcp_f32 {V(t+4+q)}, {V(t+4+q)}')
        for q in range(4):
            p(f'v_mul_f32 {V(t+q)}, {V(t+q)}, {V(t+4+q)}')
        p(f'v_cvt_pk_bf16_f32 {V(t+4)}, {V(t)}, {V(t+1)}')
        p(f'v_cvt_pk_bf16_f32 {V(t+5)}, {V(t+2)}, {V(t+3)}')
        p(f's_mov_b32 {T2}, 0x05040100\ns_mov_b32 {T3}, 0x07060302')
        P, AC = 192, 228
        for pr in range(2):
            for d in range(4):
                p(f'v_perm_b32 {V(P+8*pr+2*d)}, {V(WR+8*pr+4+d)}, {V(WR+8*pr+d)}, {T2}')
                p(f'v_perm_b32 {V(P+8*pr+2*d+1)}, {V(WR+8*pr+4+d)}, {V(WR+8*pr+d)}, {T3}')
        for e in range(8):
            p(f'v_dot2_f32_bf16 {V(AC+e)}, {V(P+e)}, {V(t+4)}, 0')
        for e in range(8):
            p(f'v_dot2_f32_bf16 {V(AC+e)}, {V(P+8+e)}, {V(t+5)}, {V(AC+e)}')
        p(f'v_readfirstlane_b32 {sTAG}, {V(EP)}')
        for e in range(4):
            p(f'v_permlane32_swap_b32 {V(AC+e)}, {V(AC+e+4)}')
        for e in range(4):
            p(f'v_add_f32 {V(AC+e)}, {V(AC+e)}, {V(AC+e+4)}')
        p(f's_add_u32 {sTAG}, {sTAG}, 1')
        for e in range(2):
            p(f'v_permlane16_swap_b32 {V(AC+e)}, {V(AC+e+2)}')
        for e in range(2):
            p(f'v_add_f32 {V(AC+e)}, {V(AC+e)}, {V(AC+e+2)}')
        for sh in (8, 4, 2):
            for e in range(2):
                p(f'v_add_f32_dpp {V(AC+e)}, {V(AC+e)}, {V(AC+e)} row_ror:{sh} row_mask:0xf bank_mask:0xf')
        p('v_and_b32 v9, 1, v0\nv_lshlrev_b32 v9, 2, v9\nv_lshrrev_b32 v10, 4, v0\nv_add_u32 v9, v9, v10')
        p(f's_lshl_b32 {T2}, {sW}, 6\ns_add_u32 {T2}, {T2}, {RED}')
        p(f'v_lshl_add_u32 v9, v9, 3, {T2}')
        p(f'ds_write_b64 v9, {V(AC,2)}')
        p(f'v_lshrrev_b32 v10, 2, v2\nv_add_u32 v10, {ONES}, v10\nv_mov_b32 v11, 0x3f803f80')
        p('ds_write_b32 v10, v11')
        self.barrier()
        p(f'v_and_b32 v9, 7, v0\nv_lshlrev_b32 v9, 3, v9\nv_add_u32 v10, {RED}, v9')
        for w in range(4):
            p(f'ds_read_b64 {V(AC+2*w,2)}, v10 offset:{64*w}')
        p(f's_lshr_b32 {T2}, s101, 5\ns_cmp_eq_u32 {T2}, 1\ns_cselect_b32 {T3}, 1.0, 0')
        p(f's_cmp_eq_u32 {T2}, 4\ns_cselect_b32 {T3}, 1.0, {T3}')
        p(f'v_pk_add_f32 {V(AC,2)}, {V(AC,2)}, {V(AC+2,2)}')
        p(f'v_pk_add_f32 {V(AC+4,2)}, {V(AC+4,2)}, {V(AC+6,2)}')
        p(f'v_pk_add_f32 {V(AC,2)}, {V(AC,2)}, {V(AC+4,2)}')
        p(f'v_cvt_pk_bf16_f32 {V(AC+2)}, {V(AC)}, {V(AC+1)}')
        self.unpack(p, AC, AC + 2, 1)
        p(f'v_add_f32 {V(AC)}, {T3}, {V(AC)}\nv_add_f32 {V(AC+1)}, {T3}, {V(AC+1)}')
        p(f'v_cvt_pk_bf16_f32 {V(AC)}, {V(AC)}, {V(AC+1)}')
        p(f'v_mov_b32 {V(AC+1)}, {sTAG}')
        p(f's_lshl_b32 {T2}, s101, 6\ns_add_u32 {T2}, {T2}, {MODG}')
        p(f's_cmp_lt_u32 {sJ}, 24\ns_cselect_b32 {T3}, 0xff, 0\ns_cmp_eq_u32 {sW}, 0\ns_cselect_b32 exec_lo, {T3}, 0\ns_mov_b32 exec_hi, 0')
        p(f'buffer_store_dwordx2 {V(AC,2)}, v9, {S4(SWS)}, {T2} offen sc1')
        p(f's_getreg_b32 {T3}, hwreg(HW_REG_XCC_ID, 0, 4)')
        p(f's_cmp_eq_u32 {sW}, 1\ns_cselect_b32 exec_lo, 1, 0')
        p(f'v_mov_b32 {V(AC+2)}, {T3}\nv_mov_b32 {V(AC+3)}, {sTAG}')
        p(f's_lshl_b32 {T2}, {sC}, 5\ns_add_u32 {T2}, {T2}, {sJ}\ns_lshl_b32 {T2}, {T2}, 3\ns_add_u32 {T2}, {T2}, {XCF}')
        p(f'buffer_store_dwordx2 {V(AC+2,2)}, off, {S4(SWS)}, {T2} sc1')
        p('s_mov_b64 exec, -1')

    def s0_stats1(self):
        p = self.p
        S1, S2_ = 176, 196
        p('v_mov_b32 v9, 0x3f803f80')
        for q in range(20):
            raw = 16 + 8 * q + 4
            for d in range(4):
                c1 = '0' if d == 0 else V(S1 + q)
                c2 = '0' if d == 0 else V(S2_ + q)
                p(f'v_dot2_f32_bf16 {V(S1+q)}, {V(raw+d)}, v9, {c1}')
                p(f'v_dot2_f32_bf16 {V(S2_+q)}, {V(raw+d)}, {V(raw+d)}, {c2}')
        for q in range(20):
            self.unpack(p, 16 + 8 * q, 16 + 8 * q + 4, 4)

    def s0_stats2(self):
        p = self.p
        S1, S2_ = 176, 196
        for base in (S1, S2_):
            for tt in range(5):
                b = base + 4 * tt
                p(f'v_permlane32_swap_b32 {V(b)}, {V(b+2)}\nv_permlane32_swap_b32 {V(b+1)}, {V(b+3)}')
        for base in (S1, S2_):
            for tt in range(5):
                b = base + 4 * tt
                p(f'v_add_f32 {V(b)}, {V(b)}, {V(b+2)}\nv_add_f32 {V(b+1)}, {V(b+1)}, {V(b+3)}')
        regs = [base + 4 * tt for base in (S1, S2_) for tt in range(5)]
        for b in regs:
            p(f'v_permlane16_swap_b32 {V(b)}, {V(b+1)}')
        for b in regs:
            p(f'v_add_f32 {V(b)}, {V(b)}, {V(b+1)}')
        for sh in (8, 4, 2, 1):
            for b in regs:
                p(f'v_add_f32_dpp {V(b)}, {V(b)}, {V(b)} row_ror:{sh} row_mask:0xf bank_mask:0xf')
        p(f's_mov_b32 {T2}, {fbits(1/512)}\nv_mov_b32 v9, {fbits(1e-5)}')
        for tt in range(5):
            a, b = S1 + 4 * tt, S2_ + 4 * tt
            p(f'v_mul_f32 {V(a)}, {T2}, {V(a)}')
            p(f'v_fma_f32 {V(b)}, {V(b)}, {T2}, v9')
        for tt in range(5):
            a, b = S1 + 4 * tt, S2_ + 4 * tt
            p(f'v_fma_f32 {V(b)}, -{V(a)}, {V(a)}, {V(b)}')
        for tt in range(5):
            b = S2_ + 4 * tt
            p(f'v_rsq_f32 {V(b)}, {V(b)}')
        for tt in range(5):
            a, b = S1 + 4 * tt, S2_ + 4 * tt
            p(f'v_mul_f32 {V(a)}, -{V(a)}, {V(b)}')
        for q in range(20):
            tt, rr = divmod(q, 4)
            p(f'v_readlane_b32 s{48+2*q}, {V(S2_+4*tt)}, {16*rr}')
            p(f'v_readlane_b32 s{49+2*q}, {V(S1+4*tt)}, {16*rr}')
        for q in range(20):
            for d in range(4):
                r = V(16 + 8 * q + 2 * d, 2)
                p(f'v_pk_fma_f32 {r}, {r}, {S2(48+2*q)}, {S2(48+2*q)} op_sel:[0,0,1] op_sel_hi:[1,0,1]')

    def tr_addr_wq(self):
        p = self.p
        p('v_bfe_u32 v9, v0, 2, 2\nv_lshrrev_b32 v10, 4, v0')
        p('v_lshl_add_u32 v11, v10, 3, v9')
        p('v_lshrrev_b32 v9, 1, v9\nv_and_b32 v10, 1, v10\nv_lshl_or_b32 v9, v10, 1, v9')
        p(f'v_xor_b32 v9, {sW}, v9')
        p('v_lshlrev_b32 v11, 7, v11\nv_lshl_add_u32 v11, v9, 5, v11')
        p('v_and_b32 v9, 3, v0\nv_lshl_add_u32 v12, v9, 3, v11')
        p(f'v_add_u32 v13, {SLOT[1]}, v12\nv_add_u32 v14, {SLOT[2]}, v12')

    def wq_tr(self, g):
        p = self.p
        vb = {0: 'v12', 1: 'v13', 2: 'v14', 3: 'v12'}[g]
        for ss in range(4):
            for part in range(3):
                for e in range(2):
                    a = (part * 16 + 4 * g + ss) * 4 + 2 * e
                    p(f'ds_read_b64_tr_b16 {A(a,2)}, {vb} offset:{part*16384+ss*4096+e*512}')

    def w2_dma(self):
        p = self.p
        p('v_lshrrev_b32 v9, 3, v0\nv_and_b32 v10, 7, v0\nv_lshlrev_b32 v10, 4, v10\nv_lshl_add_u32 v9, v9, 10, v10')
        p('v_add_u32 v10, 7168, v9')
        p(f's_lshl_b32 {T2}, {sJ}, 2\ns_add_u32 {T2}, {T2}, {sW}')
        p(f's_lshl_b32 {T3}, {T2}, 14\ns_lshl_b32 {T4}, {sC}, 7\ns_add_u32 {T3}, {T3}, {T4}')
        p(f's_lshl_b32 {T4}, {sW}, 11\ns_add_u32 m0, {T4}, {W2ST}')
        p(f's_cmp_lt_u32 {sJ}, 28\ns_cselect_b32 {T3}, {T3}, 0')
        p(f'buffer_load_dwordx4 v9, {S4(SW2)}, {T3} offen lds', tag='G3')
        p(f'buffer_load_dwordx4 v10, {S4(SW2)}, {T3} offen offset:1024 lds', tag='G3')

    def w2_tr(self):
        p = self.p
        p('v_lshrrev_b32 v9, 5, v0\nv_bfe_u32 v10, v0, 2, 2\nv_lshl_add_u32 v9, v9, 3, v10\nv_lshlrev_b32 v9, 7, v9')
        p('v_bfe_u32 v10, v0, 4, 1\nv_lshl_add_u32 v9, v10, 5, v9\nv_and_b32 v10, 3, v0\nv_lshl_add_u32 v9, v10, 3, v9')
        p(f's_lshl_b32 {T4}, {sW}, 11\ns_add_u32 {T4}, {T4}, {W2ST}')
        p(f'v_add_u32 v9, {T4}, v9')
        for cb in range(2):
            for e in range(2):
                p(f'ds_read_b64_tr_b16 {V(240+4*cb+2*e,2)}, v9 offset:{64*cb+512*e}')

    def w2_store(self):
        p = self.p
        p(f's_mul_i32 {T2}, {sC}, 112\ns_lshl_b32 {T3}, {sJ}, 2\ns_add_u32 {T2}, {T2}, {T3}\ns_add_u32 {T2}, {T2}, {sW}')
        p(f's_lshl_b32 {T2}, {T2}, 11\ns_add_u32 {T2}, {T2}, {W2T}')
        p(f's_cmp_lt_u32 {sJ}, 28\ns_cselect_b32 {T3}, 0, 0x10000000\ns_cselect_b32 {T2}, {T2}, 0')
        p(f'v_add_u32 v9, {T3}, v1')
        for cb in range(2):
            p(f'buffer_store_dwordx4 {V(240+4*cb,4)}, v9, {S4(SWS)}, {T2} offen offset:{1024*cb} sc1')

    def mod_poll(self):
        p = self.p
        R = 216
        p(f's_mov_b32 {T2}, {MODG}\ns_mov_b32 {T3}, {MODG+4096}\ns_mov_b32 {T4}, {MODG+8192}')
        p(f's_lshl_b32 {T5}, {sC}, 8\ns_add_u32 {T5}, {T5}, {XCF}')
        p('v_and_b32 v9, 31, v0\nv_lshlrev_b32 v9, 3, v9')
        loads = [f'buffer_load_dwordx4 {V(R+4*n,4)}, v2, {S4(SWS)}, {s} offen sc1' for n, s in enumerate((T2, T3, T4))]
        loads.append(f'buffer_load_dwordx2 {V(R+12,2)}, v9, {S4(SWS)}, {T5} offen sc1')
        self.poll(p, loads, [V(R + 1 + 2 * k) for k in range(7)], 1)
        p(f'v_lshrrev_b32 v9, 1, v2\nv_add_u32 v9, {MT}, v9')
        for n in range(3):
            if n:
                p('v_add_u32 v9, 2048, v9')
            p(f'ds_write2_b32 v9, {V(R+4*n)}, {V(R+4*n+2)} offset0:0 offset1:1')
        if self.twin:
            p(f'v_readfirstlane_b32 {T2}, {V(R+12)}')
            p(f'v_cmp_ne_u32 vcc, {T2}, {V(R+12)}')
            p(f's_cmp_lg_u64 vcc, 0\ns_cselect_b32 {sMODE}, 1, 0')

    def wo_dma(self):
        p = self.p
        p('v_lshrrev_b32 v9, 3, v0\nv_bfe_u32 v10, v0, 4, 1\nv_lshlrev_b32 v10, 2, v10\nv_and_b32 v11, 7, v0\nv_xor_b32 v10, v10, v11')
        p('v_lshlrev_b32 v9, 10, v9\nv_lshl_add_u32 v9, v10, 4, v9')
        p('v_add_u32 v10, 7168, v9\nv_add_u32 v11, 7168, v10\nv_add_u32 v15, 7168, v11')
        p(f's_lshl_b32 {T2}, {sW}, 17\ns_lshl_b32 {T3}, {sQ8}, 7\ns_add_u32 {T2}, {T2}, {T3}')
        p(f's_lshl_b32 {T3}, {sW}, 14')
        for m in range(4):
            p(f's_add_u32 m0, {T3}, {4096*m}')
            for k, vv in enumerate(('v9', 'v10', 'v11', 'v15')):
                p(f'buffer_load_dwordx4 {vv}, {S4(SWO)}, {T2} offen offset:{1024*k} lds', tag='WO')
            if m < 3:
                p(f's_add_u32 {T2}, {T2}, 32768')

    def modulate(self):
        p = self.p
        GP, SP, Gf, Sf = 216, 220, 176, 184
        p(f'v_add_u32 v9, {MT}, v1')
        p(f'ds_read_b128 {V(SP,4)}, v9\nds_read_b128 {V(GP,4)}, v9 offset:1024')
        for rr in range(4):
            p(f's_lshl_b32 {T2}, {sW}, 2\ns_add_u32 {T2}, {T2}, {rr}')
            p(f's_lshl_b32 {T3}, {T2}, 10\ns_add_u32 {T3}, {T3}, {LA}')
            p(f'v_xor_b32 v{3+rr}, {T2}, v0\nv_lshl_add_u32 v{3+rr}, v{3+rr}, 4, {T3}')
        self.unpack(p, Gf, GP, 4)
        self.unpack(p, Sf, SP, 4)
        for q in range(20):
            tt, rr = divmod(q, 4)
            b = 16 + 8 * q
            for d in range(4):
                r = V(b + 2 * d, 2)
                p(f'v_pk_fma_f32 {r}, {r}, {V(Gf+2*d,2)}, {V(Sf+2*d,2)}')
            for d in range(4):
                p(f'v_cvt_pk_bf16_f32 {V(b+d)}, {V(b+2*d)}, {V(b+2*d+1)}')
            p(f'ds_write_b128 v{3+rr}, {V(b,4)} offset:{0 if tt == 0 else (tt-1)*16384}')
            if tt == 0:
                p(f'v_add_u32 v{3+rr}, 16384, v{3+rr}')

    def masks(self):
        p = self.p
        p('v_and_b32 v9, 15, v0\nv_lshrrev_b32 v10, 4, v0\nv_lshlrev_b32 v10, 2, v10')
        for r in range(4):
            p(f'v_add_u32 v11, {r}, v10')
            p('v_sub_u32 v15, v9, v11')
            p(f'v_cmp_ge_u32 {S2(48+2*r)}, 7, v15')
            p(f'v_cmp_ge_i32 {S2(56+2*r)}, -9, v15')
            p(f'v_cmp_gt_i32 {S2(64+2*r)}, 0, v15')
            p('v_cmp_ge_u32 vcc, 7, v11')
            p(f's_and_b64 {S2(64+2*r)}, {S2(64+2*r)}, vcc')
        p(f's_cmp_eq_u32 {sB64}, 0')
        for r in range(4):
            p(f's_cselect_b64 {S2(72+2*r)}, 0, {S2(56+2*r)}')
            p(f's_cselect_b64 {S2(64+2*r)}, 0, {S2(64+2*r)}')

    def p1_gemm(self):
        p = self.p
        p('v_and_b32 v9, 15, v0\nv_lshrrev_b32 v10, 4, v0')
        p(f'v_lshlrev_b32 v11, 10, v9\nv_add_u32 v11, {LA}, v11')
        for m in range(4):
            p(f'v_add_u32 v15, {4*m}, v10\nv_xor_b32 v15, v15, v9\nv_lshl_add_u32 v{3+m}, v15, 4, v11')
        RING, NR, PD = 16, 8, 6
        ACC = 48
        steps = [(tt, s) for tt in range(5) for s in range(16)]

        def rd(n):
            tt, s = steps[n]
            if (tt, s) == (1, 0):
                for m in range(4):
                    p(f'v_add_u32 v{3+m}, 16384, v{3+m}')
            off = (0 if tt == 0 else (tt - 1) * 16384) + (s >> 2) * 256
            p(f'ds_read_b128 {V(RING+4*(n%NR),4)}, v{3+(s&3)} offset:{off}')
        for n in range(PD):
            rd(n)
        for n, (tt, s) in enumerate(steps):
            if n + PD < len(steps):
                rd(n + PD)
            f = V(RING + 4 * (n % NR), 4)
            q, k, v = (V(ACC + 12 * tt + 4 * x, 4) for x in range(3))
            if tt:
                p(f'v_mfma_f32_16x16x32_bf16 {q}, {A((0*16+s)*4,4)}, {f}, {q if s else 0}')
            p(f'v_mfma_f32_16x16x32_bf16 {k}, {A((1*16+s)*4,4)}, {f}, {k if s else 0}')
            p(f'v_mfma_f32_16x16x32_bf16 {v}, {f}, {A((2*16+s)*4,4)}, {v if s else 0}')

    def w1_addr(self):
        p = self.p
        p(f's_movk_i32 {T2}, 4682\ns_movk_i32 {T3}, 3584\ns_mul_i32 {T4}, {sNQ}, 224')
        for q in range(7):
            p(f'v_add_u32 v9, {64*q}, v0')
            p(f'v_mul_u32_u24 v10, {T2}, v9\nv_lshrrev_b32 v10, 16, v10')
            p('v_mul_u32_u24 v11, 14, v10\nv_sub_u32 v9, v9, v11')
            p('v_and_b32 v11, 19, v10')
            p('v_bfe_u32 v15, v10, 2, 1\nv_lshl_or_b32 v11, v15, 3, v11')
            p('v_bfe_u32 v15, v10, 3, 1\nv_lshl_or_b32 v11, v15, 2, v11')
            p(f'v_lshlrev_b32 v9, 4, v9\nv_mad_u32_u24 v9, v11, {T3}, v9')
            p(f's_sub_u32 {T5}, {T4}, {1024*(q&3)}')
            p(f'v_add_u32 v{224+q}, {T5}, v9')

    def w1_dma(self, p, m, tag):
        p(f's_add_u32 {T2}, {sW}, {4*m}')
        p(f's_mul_i32 {T3}, {T2}, 7168\ns_mul_i32 {T2}, {T2}, 114688')
        p(f's_add_u32 m0, {T3}, {W1B}')
        for q in range(7):
            if q == 4:
                p(f's_add_u32 m0, {T3}, {W1B+4096}')
            p(f'buffer_load_dwordx4 v{224+q}, {S4(SW1)}, {T2} offen offset:{1024*(q&3)} lds', tag=tag)

    def wo_tr(self, p):
        p('v_bfe_u32 v9, v0, 2, 2\nv_lshrrev_b32 v10, 4, v0\nv_lshl_add_u32 v10, v10, 3, v9\nv_lshlrev_b32 v10, 7, v10')
        p('v_lshrrev_b32 v9, 1, v9\nv_lshlrev_b32 v9, 2, v9\nv_and_b32 v11, 3, v0\nv_or_b32 v9, v9, v11')
        p('v_lshl_add_u32 v12, v9, 4, v10\nv_xor_b32 v9, 4, v9\nv_lshl_add_u32 v13, v9, 4, v10')
        for s in range(16):
            for ct in range(4):
                for e in range(2):
                    p(f'ds_read_b64_tr_b16 {A((s*4+ct)*4+2*e,2)}, v{12+(ct>>1)} offset:{s*4096+e*512+8*(ct&1)}')

    def attention(self):
        p = self.p
        ACC = 48
        QP, KP, VP = 108, 116, 126
        vpos = {3: 0, 1: 2, 0: 4, 2: 6, 4: 8}
        ON, NEG = 136, 140
        SB, MX, PQ, OO, SU, OP = 144, 176, 184, 200, 232, 216
        for k in range(4):
            p(f'v_mov_b32 {V(ON+k)}, 0x3f803f80')
        p(f'v_mov_b32 {V(NEG)}, {fbits(-1e30)}')
        cs = fbits(0.25 * math.log2(math.e))
        p(f's_mov_b32 {T5}, {cs}')
        for tt in range(5):
            b = ACC + 12 * tt
            for h in range(2):
                if tt:
                    p(f'v_cvt_pk_bf16_f32 {V(QP+2*(tt-1)+h)}, {V(b+2*h)}, {V(b+2*h+1)}')
                p(f'v_cvt_pk_bf16_f32 {V(KP+2*tt+h)}, {V(b+4+2*h)}, {V(b+4+2*h+1)}')
                p(f'v_cvt_pk_bf16_f32 {V(VP+vpos[tt]+h)}, {V(b+8+2*h)}, {V(b+8+2*h+1)}')
        prev = {0: 0, 1: 0, 2: 1, 3: 2}
        for t in range(4):
            p(f'v_mfma_f32_16x16x16_bf16 {V(SB+8*t,4)}, {V(KP+2*(t+1),2)}, {V(QP+2*t,2)}, 0')
            p(f'v_mfma_f32_16x16x16_bf16 {V(SB+8*t+4,4)}, {V(KP+2*prev[t],2)}, {V(QP+2*t,2)}, 0')
        pm = {0: 64, 1: 72, 2: 56, 3: 56}
        for t in range(4):
            for r in range(4):
                p(f'v_cndmask_b32 {V(SB+8*t+r)}, {V(NEG)}, {V(SB+8*t+r)}, {S2(48+2*r)}')
                p(f'v_cndmask_b32 {V(SB+8*t+4+r)}, {V(NEG)}, {V(SB+8*t+4+r)}, {S2(pm[t]+2*r)}')
        for t in range(4):
            s = SB + 8 * t
            p(f'v_max3_f32 {V(MX+t)}, {V(s)}, {V(s+1)}, {V(s+2)}')
            p(f'v_max3_f32 {V(MX+4+t)}, {V(s+3)}, {V(s+4)}, {V(s+5)}')
        for t in range(4):
            s = SB + 8 * t
            p(f'v_max3_f32 {V(MX+t)}, {V(MX+t)}, {V(s+6)}, {V(s+7)}')
        for t in range(4):
            p(f'v_max_f32 {V(MX+t)}, {V(MX+t)}, {V(MX+4+t)}')
        for a in (0, 2):
            p(f'v_permlane32_swap_b32 {V(MX+a)}, {V(MX+a+1)}')
        for a in (0, 2):
            p(f'v_max_f32 {V(MX+a)}, {V(MX+a)}, {V(MX+a+1)}')
        for a in (0, 2):
            p(f'v_mov_b32 {V(MX+a+1)}, {V(MX+a)}')
        for a in (0, 2):
            p(f'v_permlane16_swap_b32 {V(MX+a)}, {V(MX+a+1)}')
        for a in (0, 2):
            p(f'v_max_f32 {V(MX+a)}, {V(MX+a)}, {V(MX+a+1)}')
        for a in (0, 2):
            p(f'v_mul_f32 {V(MX+a)}, {T5}, {V(MX+a)}')
        for a in (0, 2):
            p(f'v_mov_b32 {V(MX+a+1)}, {V(MX+a)}')
        for a in (0, 2):
            p(f'v_permlane32_swap_b32 {V(MX+a)}, {V(MX+a+1)}')
        p('v_and_b32 v9, 15, v0\nv_lshlrev_b32 v9, 4, v9\nv_lshrrev_b32 v10, 5, v0\nv_lshl_add_u32 v9, v10, 8, v9')
        p('v_bfe_u32 v10, v0, 4, 1\nv_lshl_add_u32 v9, v10, 3, v9')
        p(f's_lshl_b32 {T2}, {sB64}, 16\ns_lshl_b32 {T3}, {sQ8}, 11\ns_add_u32 {T2}, {T2}, {T3}')
        p(f's_lshl_b32 {T3}, {sW}, 9\ns_add_u32 {T2}, {T2}, {T3}\ns_add_u32 {T2}, {T2}, {OBUF}')
        for t in range(4):
            s = SB + 8 * t
            for r in range(8):
                p(f'v_fma_f32 {V(s+r)}, {V(s+r)}, {T5}, -{V(MX+t)}')
            for r in range(8):
                p(f'v_exp_f32 {V(s+r)}, {V(s+r)}')
            cur_first = t in (0, 2)
            for h in range(4):
                src = s + 2 * h if cur_first else s + (2 * h + 4) % 8
                p(f'v_cvt_pk_bf16_f32 {V(PQ+4*t+h)}, {V(src)}, {V(src+1)}')
        vq = {2: 0, 0: 2, 1: 4, 3: 6}
        for t in range(4):
            p(f'v_mfma_f32_16x16x32_bf16 {V(SU+4*t,4)}, {V(ON,4)}, {V(PQ+4*t,4)}, 0')
            p(f'v_mfma_f32_16x16x32_bf16 {V(OO+4*t,4)}, {V(VP+vq[t],4)}, {V(PQ+4*t,4)}, 0')
        for t in range(4):
            p(f'v_rcp_f32 {V(SU+4*t)}, {V(SU+4*t)}')
        for t in range(4):
            for h in range(2):
                r = V(OO + 4 * t + 2 * h, 2)
                p(f'v_pk_mul_f32 {r}, {r}, {V(SU+4*t,2)} op_sel_hi:[1,0]')
            for h in range(2):
                p(f'v_cvt_pk_bf16_f32 {V(OP+2*t+h)}, {V(OO+4*t+2*h)}, {V(OO+4*t+2*h+1)}')
        for t in range(4):
            if t:
                p(f's_add_u32 {T2}, {T2}, 16384')
            self.st(p, f'buffer_store_dwordx2 {V(OP+2*t,2)}, v9, {S4(SWS)}, {T2} offen')

    def flag(self, off_sgpr):
        p = self.p
        p.wait_vm(None)
        p(f'v_mov_b32 v9, {sTAG}')
        p('s_mov_b64 exec, 1')
        self.st(p, f'buffer_store_dword v9, off, {S4(SWS)}, {off_sgpr}')
        p('s_mov_b64 exec, -1')

    def row_off(self, p, vreg, sreg):
        p(f'v_and_b32 v9, 15, v0\nv_lshlrev_b32 v9, 11, v9\nv_lshrrev_b32 v10, 4, v0\nv_lshl_add_u32 {vreg}, v10, 4, v9')
        p(f's_lshr_b32 {T3}, {sW}, 1\ns_lshl_b32 {T3}, {T3}, 5\ns_and_b32 {T4}, {sW}, 1\ns_add_u32 {T3}, {T3}, {T4}')
        p(f's_lshl_b32 {T4}, {sB64}, 6\ns_add_u32 {T3}, {T3}, {T4}\ns_lshl_b32 {T3}, {T3}, 10')
        p(f's_lshl_b32 {T4}, {sQ8}, 7\ns_add_u32 {sreg}, {T3}, {T4}')

    def p2(self):
        p = self.p
        OF, AC, XR, XF, GAR, GAF, G2P, SBP, G2F, U, UGF, UP, MM = 16, 80, 96, 104, 120, 128, 144, 152, 160, 232, 176, 192, 200
        self.row_off(p, 'v3', T2)
        for hh in range(2):
            p(f'buffer_load_dwordx4 {V(XR+4*hh,4)}, v3, {S4(SX)}, {T2} offen offset:{64*hh}')
        p(f's_lshl_b32 {T2}, {sQ8}, 7\ns_add_u32 {T2}, {T2}, {MT}')
        p(f'v_lshrrev_b32 v9, 4, v0\nv_lshl_add_u32 v4, v9, 4, {T2}')
        for hh in range(2):
            p(f'ds_read_b128 {V(GAR+4*hh,4)}, v4 offset:{2*1024+64*hh}')
            p(f'ds_read_b128 {V(G2P+4*hh,4)}, v4 offset:{4*1024+64*hh}')
            p(f'ds_read_b128 {V(SBP+4*hh,4)}, v4 offset:{3*1024+64*hh}')
        self.barrier()
        self.unpack(p, GAF, GAR, 8)
        self.unpack(p, G2F, G2P, 8)
        self.unpack(p, XF, XR, 8)
        p('v_mov_b32 v8, 0x3f803f80')
        p(f's_lshl_b32 {T2}, {sB64}, 7\ns_add_u32 {T2}, {T2}, {FLG1}')
        p('v_and_b32 v9, 31, v0\nv_lshlrev_b32 v9, 2, v9')
        p(f's_lshl_b32 {T3}, {sB64}, 2\ns_add_u32 {T3}, {T3}, {sW}')
        p(f's_lshl_b32 {T4}, {T3}, 14\ns_add_u32 {T4}, {T4}, {OBUF}')
        self.stamp()
        self.poll(p, [f'buffer_load_dword v10, v9, {S4(SWS)}, {T2} offen sc1'], ['v10'], 2)
        self.stamp()
        for s in range(16):
            if s and s % 4 == 0:
                p(f's_add_u32 {T4}, {T4}, 4096')
            p(f'buffer_load_dwordx4 {V(OF+4*s,4)}, v1, {S4(SWS)}, {T4} offen offset:{1024*(s&3)} sc1')
        p(f's_mov_b32 {T5}, {T3}')
        self.w1_dma(p, 0, 'W1')
        for s in range(16):
            for ct in range(4):
                a = V(AC + 4 * ct, 4)
                p(f'v_mfma_f32_16x16x32_bf16 {a}, {A((s*4+ct)*4,4)}, {V(OF+4*s,4)}, {a if s else 0}')
        p(f's_lshl_b32 {T2}, {T5}, 14\ns_lshl_b32 {T3}, {sQ8}, 11\ns_add_u32 {T2}, {T2}, {T3}\ns_add_u32 {T2}, {T2}, {UG}')
        for k in range(8):
            p(f'v_pk_fma_f32 {V(XF+2*k,2)}, {V(AC+2*k,2)}, {V(GAF+2*k,2)}, {V(XF+2*k,2)}')
        for k in range(8):
            p(f'v_cvt_pk_bf16_f32 {V(U+k)}, {V(XF+2*k)}, {V(XF+2*k+1)}')
        self.unpack(p, XF, U, 8)
        for k in range(8):
            p(f'v_pk_mul_f32 {V(UGF+2*k,2)}, {V(XF+2*k,2)}, {V(G2F+2*k,2)}')
        for k in range(8):
            p(f'v_cvt_pk_bf16_f32 {V(UP+k)}, {V(UGF+2*k)}, {V(UGF+2*k+1)}')
        for hh in range(2):
            self.st(p, f'buffer_store_dwordx4 {V(UP+4*hh,4)}, v1, {S4(SWS)}, {T2} offen offset:{1024*hh}')
        for k in range(8):
            ops = [(U + k, 8), (U + k, U + k), (UP + k, 8), (UP + k, G2P + k), (UP + k, UP + k), (UP + k, SBP + k)]
            for m, (a, b) in enumerate(ops):
                p(f'v_dot2_f32_bf16 {V(MM+m)}, {V(a)}, {V(b)}, {V(MM+m) if k else 0}')
        p('v_and_b32 v9, 15, v0\nv_lshlrev_b32 v9, 5, v9\nv_lshrrev_b32 v10, 4, v0\nv_lshl_add_u32 v9, v10, 3, v9')
        p(f's_lshl_b32 {T2}, {T5}, 3\ns_add_u32 {T2}, {T2}, {sQ8}\ns_lshl_b32 {T2}, {T2}, 9\ns_add_u32 {T2}, {T2}, {MOM}')
        for m in (0, 2, 4):
            p(f'v_permlane32_swap_b32 {V(MM+m)}, {V(MM+m+1)}')
        for m in (0, 2, 4):
            p(f'v_add_f32 {V(MM+m)}, {V(MM+m)}, {V(MM+m+1)}')
        p(f'v_mov_b32 {V(MM+5)}, {V(MM+4)}')
        p(f'v_permlane16_swap_b32 {V(MM)}, {V(MM+2)}')
        p(f'v_permlane16_swap_b32 {V(MM+4)}, {V(MM+5)}')
        p(f'v_add_f32 {V(MM)}, {V(MM)}, {V(MM+2)}')
        p(f'v_add_f32 {V(MM+1)}, {V(MM+4)}, {V(MM+5)}')
        self.st(p, f'buffer_store_dwordx2 {V(MM,2)}, v9, {S4(SWS)}, {T2} offen')
        p(f's_lshl_b32 {T2}, {T5}, 3\ns_add_u32 {T2}, {T2}, {sQ8}\ns_lshl_b32 {T2}, {T2}, 2\ns_add_u32 {T2}, {T2}, {FLG2}')
        self.stamp()
        self.flag(T2)
        self.stamp()

    def w1_tr_addr(self):
        p = self.p
        p('v_lshrrev_b32 v9, 5, v0\nv_bfe_u32 v10, v0, 4, 1\nv_lshlrev_b32 v9, 4, v9\nv_lshl_add_u32 v9, v10, 2, v9')
        p('v_bfe_u32 v10, v0, 2, 2\nv_add_u32 v9, v9, v10')
        p(f's_movk_i32 {T2}, 224')
        p(f'v_and_b32 v10, 3, v0\nv_lshlrev_b32 v10, 3, v10\nv_mad_u32_u24 v9, v9, {T2}, v10')
        p(f'v_add_u32 v3, {W1B}, v9\nv_add_u32 v4, {W1B+57344}, v9')

    def gsc(self):
        p = self.p
        AS, BF, D0, DG, B1R, RR = 16, 224, 80, 88, 92, 96
        p(f's_mul_i32 {T2}, {sNQ}, 112\ns_lshl_b32 {T3}, {sW}, 4\ns_add_u32 {T2}, {T2}, {T3}')
        p(f'v_and_b32 v9, 15, v0\nv_add_u32 v9, {T2}, v9\nv_add_u32 v10, 64, v9\nv_min_u32 v10, 1791, v10')
        p('v_lshlrev_b32 v9, 1, v9\nv_lshlrev_b32 v10, 1, v10')
        p(f'global_load_ushort {V(B1R)}, v9, {S2(pB1)}\nglobal_load_ushort {V(B1R+1)}, v10, {S2(pB1)}')
        self.w1_tr_addr()
        p(f'v_and_b32 v9, 3, v0\nv_mov_b32 v10, {ONES}\nv_mov_b32 v11, {MT+4096}\nv_cmp_eq_u32 vcc, 0, v9\nv_cndmask_b32 v10, v10, v11, vcc')
        p(f'v_mov_b32 v11, {MT+3072}\nv_cmp_eq_u32 vcc, 1, v9\nv_cndmask_b32 v10, v10, v11, vcc')
        p('v_lshrrev_b32 v9, 4, v0\nv_lshl_add_u32 v5, v9, 4, v10')
        p(f's_lshl_b32 {T2}, {sW}, 5')
        p(f'v_add_u32 v6, {T2}, v3\nv_add_u32 v7, {T2}, v4')
        self.barrier()
        for s in range(16):
            p(f'ds_read_b128 {V(AS+4*s,4)}, v5 offset:{64*s}')

        def rd(s):
            for t in range(2):
                for e in range(2):
                    a = BF + 8 * (s & 3) + 4 * t + 2 * e
                    p(f'ds_read_b64_tr_b16 {A(a,2)}, v{6+(s>>3)} offset:{(s&7)*7168+e*1792+128*t}')
        for s in range(3):
            rd(s)
        for s in range(16):
            if s + 3 < 16:
                rd(s + 3)
            f = V(AS + 4 * s, 4)
            p(f'v_mfma_f32_16x16x32_bf16 {V(DG,4)}, {f}, {f}, {V(DG,4) if s else 0}')
            for t in range(2):
                d = V(D0 + 4 * t, 4)
                p(f'v_mfma_f32_16x16x32_bf16 {d}, {f}, {A(BF+8*(s&3)+4*t,4)}, {d if s else 0}')
        p('s_mov_b32 s60, 0xffff0000\ns_mov_b32 s61, 0xffff0000')
        p('s_mov_b32 s62, -1\ns_mov_b32 s63, 0\ns_mov_b32 s64, 0\ns_mov_b32 s65, -1')
        p(f's_lshl_b32 {T2}, {sW}, 10\ns_add_u32 {T2}, {T2}, {CORR}')
        p(f'v_add_u32 v9, {T2}, v1')
        for k in range(3):
            p(f'v_mul_f32 {V(DG+k)}, {fbits(1/512)}, {V(DG+k)}')
        for t in range(2):
            g_, s_, c_ = D0 + 4 * t, D0 + 4 * t + 1, D0 + 4 * t + 2
            r = RR + 4 * t
            t0 = 104 + 10 * t
            p(f'v_cvt_pk_bf16_f32 {V(r+1)}, {V(g_)}, {V(s_)}')
            p(f'v_cvt_pk_bf16_f32 {V(t0)}, {V(c_)}, {V(c_)}')
            p(f'v_lshlrev_b32 {V(t0+1)}, 16, {V(r+1)}')
            p(f'v_and_b32 {V(t0+2)}, 0xffff0000, {V(r+1)}')
            p(f'v_lshlrev_b32 {V(t0)}, 16, {V(t0)}')
            p(f'v_lshlrev_b32 {V(t0+3)}, 16, {V(B1R+t)}')
            p(f'v_sub_f32 {V(g_)}, {V(g_)}, {V(t0+1)}')
            p(f'v_sub_f32 {V(s_)}, {V(s_)}, {V(t0+2)}')
            p(f'v_sub_f32 {V(c_)}, {V(c_)}, {V(t0)}')
            p(f'v_cvt_pk_bf16_f32 {V(r)}, {V(t0+1)}, {V(g_)}')
            p(f'v_cvt_pk_bf16_f32 {V(r+2)}, {V(s_)}, {V(t0+2)}')
            p(f'v_cvt_pk_bf16_f32 {V(r+3)}, {V(t0)}, {V(c_)}')
            p(f'v_cvt_pk_bf16_f32 {V(t0+4)}, {V(t0)}, {V(t0+3)}')
            p(f'v_cndmask_b32 {V(r)}, {V(r)}, {V(t0+4)}, s[60:61]')
            p(f'v_cndmask_b32 {V(r+1)}, {V(r+1)}, {V(B1R+t)}, s[60:61]')
            p(f'v_cndmask_b32 {V(r+2)}, {V(r+2)}, 0, s[60:61]')
            p(f'v_cndmask_b32 {V(r+3)}, {V(r+3)}, 0, s[60:61]')
            p(f'ds_write_b128 v9, {V(r,4)} offset:{4096*t}')
        p(f'v_readlane_b32 s50, {V(DG)}, 0\nv_readlane_b32 s51, {V(DG+1)}, 0\nv_readlane_b32 s52, {V(DG+2)}, 0')
        p(f'v_readlane_b32 s53, {V(DG+1)}, 1\nv_readlane_b32 s54, {V(DG+2)}, 1')
        self.barrier()

    def p3_token(self, q):
        MR, t = 200, 200
        XA, XB, PA0, PA1, PIA = 208, 212, 240, 242, 244
        for par in range(2):
            for k in range(4):
                b = MR + 16 * par + 2 * k
                q(f'v_pk_add_f32 {V(b,2)}, {V(b,2)}, {V(b+8,2)}')
        slots = (0, 1, 2, 4, 5, 6)
        for sl in slots:
            q(f'v_permlane32_swap_b32 {V(MR+sl)}, {V(MR+16+sl)}')
        for sl in slots:
            q(f'v_add_f32 {V(MR+sl)}, {V(MR+sl)}, {V(MR+16+sl)}')
        for sl in slots:
            q(f'v_mov_b32 {V(MR+16+sl)}, {V(MR+sl)}')
        for sl in slots:
            q(f'v_permlane16_swap_b32 {V(MR+sl)}, {V(MR+16+sl)}')
        for sl in slots:
            q(f'v_add_f32 {V(MR+sl)}, {V(MR+sl)}, {V(MR+16+sl)}')
        q(f's_mov_b32 s55, {fbits(1/512)}')
        for sl in slots:
            q(f'v_mul_f32 {V(MR+sl)}, s55, {V(MR+sl)}')
        m0, m4, m2, m1, m5, m3 = (V(MR + sl) for sl in slots)
        w = [V(216 + k) for k in range(16)]
        q(f'v_mov_b32 {w[15]}, {fbits(1e-5)}')
        q(f'v_add_f32 {m1}, {m1}, {w[15]}')
        q(f'v_fma_f32 {w[0]}, -{m0}, {m0}, {m1}')
        q(f'v_rsq_f32 {w[1]}, {w[0]}')
        q(f'v_fma_f32 {m2}, -{m0}, s52, {m2}')
        q(f'v_mul_f32 {w[2]}, s50, {m0}')
        q(f'v_fma_f32 {w[2]}, -2.0, {m3}, {w[2]}')
        q(f'v_fma_f32 {w[2]}, {m0}, {w[2]}, {m4}')
        q(f'v_fma_f32 {m5}, -{m0}, s51, {m5}')
        q(f'v_mul_f32 {w[0]}, {w[0]}, {w[1]}')
        q(f'v_fma_f32 {m2}, {w[1]}, {m2}, s54')
        q(f'v_mul_f32 {w[2]}, {w[1]}, {w[2]}')
        q(f'v_fma_f32 {w[2]}, 2.0, {m5}, {w[2]}')
        q(f'v_fma_f32 {w[2]}, {w[1]}, {w[2]}, s53')
        q(f'v_add_f32 {w[2]}, {w[2]}, {w[15]}')
        q(f'v_fma_f32 {w[2]}, -{m2}, {m2}, {w[2]}')
        q(f'v_rsq_f32 {w[3]}, {w[2]}')
        q(f'v_mul_f32 {w[4]}, -{m2}, {w[0]}')
        q(f'v_sub_f32 {m0}, 0, {m0}')
        q(f'v_mul_f32 {w[2]}, {w[2]}, {w[3]}')
        q(f'v_mul_f32 {w[3]}, {w[1]}, {w[3]}')
        q(f'v_mul_f32 {V(PIA)}, {w[0]}, {w[2]}')
        c0 = -2 * math.sqrt(2 / math.pi) * math.log2(math.e)
        q(f'v_mul_f32 {V(PA0)}, {fbits(c0)}, {w[3]}')
        q(f'v_mul_f32 {w[5]}, {w[3]}, {w[3]}')
        q(f'v_mul_f32 {w[5]}, {fbits(0.044715)}, {w[5]}')
        q(f'v_mul_f32 {V(PA1)}, {w[5]}, {V(PA0)}')
        q(f'v_cvt_pk_bf16_f32 {w[6]}, {m0}, {w[0]}')
        q(f'v_cvt_pk_bf16_f32 {w[7]}, {w[4]}, {V(PIA)}')
        q(f'v_lshlrev_b32 {w[8]}, 16, {w[6]}')
        q(f'v_and_b32 {w[9]}, 0xffff0000, {w[6]}')
        q(f'v_lshlrev_b32 {w[10]}, 16, {w[7]}')
        q(f'v_and_b32 {w[11]}, 0xffff0000, {w[7]}')
        q(f'v_sub_f32 {m0}, {m0}, {w[8]}')
        q(f'v_sub_f32 {w[0]}, {w[0]}, {w[9]}')
        q(f'v_sub_f32 {w[4]}, {w[4]}, {w[10]}')
        q(f'v_sub_f32 {w[5]}, {V(PIA)}, {w[11]}')
        x = [V(MR + 1), V(MR + 2), V(MR + 3), V(MR + 4)]
        q(f'v_cvt_pk_bf16_f32 {x[0]}, {w[8]}, {w[8]}')
        q(f'v_cvt_pk_bf16_f32 {x[1]}, {m0}, {w[9]}')
        q(f'v_cvt_pk_bf16_f32 {x[2]}, {w[9]}, {w[0]}')
        q(f'v_cvt_pk_bf16_f32 {x[3]}, {w[10]}, {w[10]}')
        q(f'v_cvt_pk_bf16_f32 {w[12]}, {w[4]}, {w[11]}')
        q(f'v_cvt_pk_bf16_f32 {w[13]}, {w[5]}, 0')
        q(f'v_cndmask_b32 {x[0]}, {x[0]}, {w[12]}, s[60:61]')
        q(f'v_cndmask_b32 {x[1]}, {x[1]}, {w[13]}, s[60:61]')
        q(f'v_cndmask_b32 {x[2]}, {x[2]}, 0, s[60:61]')
        q(f'v_cndmask_b32 {x[3]}, {x[3]}, 0, s[60:61]')
        for k in range(4):
            q(f'v_cndmask_b32 {V(XA+k)}, 0, {x[k]}, s[62:63]')
            q(f'v_cndmask_b32 {V(XB+k)}, 0, {x[k]}, s[64:65]')
        for r in (PA0, PA1, PIA):
            q(f'v_mov_b32 {V(r+1)}, {V(r)}')
        for r in (PA0, PA1, PIA):
            q(f'v_permlane32_swap_b32 {V(r)}, {V(r+1)}')

    def p3(self):
        p = self.p
        UF, AC, MR = 16, 144, 200
        XA, XB, PA0, PA1, PIA = 208, 212, 240, 242, 244
        p(f's_lshl_b32 {T5}, {sB128}, 3\ns_lshl_b32 {T3}, {sW}, 1\ns_add_u32 {T5}, {T5}, {T3}')
        p(f's_lshl_b32 {T2}, {T5}, 5\ns_add_u32 {T2}, {T2}, {FLG2}\ns_mov_b32 {T3}, {W2F}')
        p('v_and_b32 v9, 15, v0\nv_lshlrev_b32 v5, 5, v9\nv_lshlrev_b32 v9, 2, v9\nv_lshrrev_b32 v10, 4, v0\nv_lshl_add_u32 v5, v10, 10, v5')
        self.stamp()
        self.poll(p, [f'buffer_load_dword v10, v9, {S4(SWS)}, {T2} offen sc1',
                      f'buffer_load_dwordx4 v[12:15], v1, {S4(SWS)}, {T3} offen sc1'], ['v10', 'v12', 'v13', 'v14', 'v15'], 3)
        self.stamp()
        p(f's_lshl_b32 {T2}, {T5}, 12\ns_add_u32 {T2}, {T2}, {MOM}\ns_add_u32 {T3}, {T2}, 4096')
        for par in range(2):
            for cqi in range(2):
                for h in range(2):
                    p(f'buffer_load_dwordx4 {V(MR+16*par+8*cqi+4*h,4)}, v5, {S4(SWS)}, {(T2,T3)[par]} offen offset:{512*cqi+16*h} sc1')
        p(f's_lshl_b32 {T2}, {T5}, 14\ns_add_u32 {T2}, {T2}, {UG}\ns_add_u32 {T3}, {T2}, 16384')
        for s in range(16):
            if s and s % 4 == 0:
                p(f's_add_u32 {T2}, {T2}, 4096\ns_add_u32 {T3}, {T3}, 4096')
            for par in range(2):
                p(f'buffer_load_dwordx4 {V(UF+8*s+4*par,4)}, v1, {S4(SWS)}, {(T2,T3)[par]} offen offset:{1024*(s&3)} sc1')
        p(f's_or_b32 {T2}, s2, {sW}\ns_cmp_eq_u32 {T2}, 0\ns_cselect_b32 exec_lo, 1, 0\ns_mov_b32 exec_hi, 0')
        p(f'v_mov_b32 v9, {sTAG}')
        p(f'buffer_store_dword v9, off, {S4(SWS)}, 0 sc1')
        p('s_mov_b64 exec, -1')
        side = Prog()
        side(f's_mul_i32 {T4}, {sQ8}, 112\ns_mul_i32 {T3}, {sW}, 28\ns_add_u32 {T4}, {T4}, {T3}\ns_lshl_b32 {T4}, {T4}, 11\ns_add_u32 {T4}, {T4}, {W2T}')
        for i in range(56):
            if i and i % 4 == 0:
                side(f's_add_u32 {T4}, {T4}, 4096')
            side(f'buffer_load_dwordx4 {A(4*i,4)}, v1, {S4(SWS)}, {T4} offen offset:{1024*(i&3)} sc1')
        main = Prog()
        NF = 112

        def rd(n):
            s, t = divmod(n, 7)
            for e in range(2):
                main(f'ds_read_b64_tr_b16 {A(224+4*(n%8)+2*e,2)}, v{3+(s>>3)} offset:{(s&7)*7168+e*1792+32*t}')
        pre = Prog()
        for n in range(7):
            s, t = divmod(n, 7)
            for e in range(2):
                pre(f'ds_read_b64_tr_b16 {A(224+4*(n%8)+2*e,2)}, v{3+(s>>3)} offset:{(s&7)*7168+e*1792+32*t}')
        p.extend(pre)
        self.p3_token(p)
        for n in range(NF):
            s, t = divmod(n, 7)
            for par in range(2):
                a = V(AC + 8 * t + 4 * par, 4)
                main(f'v_mfma_f32_16x16x32_bf16 {a}, {A(224+4*(n%8),4)}, {V(UF+8*s+4*par,4)}, {a if s else 0}')
            if n + 7 < NF:
                rd(n + 7)
        p.extend(spread(main, side, lo=20, hi=200, is_slot=lambda i: i.kind == 'mfma'))
        CO = 16
        p(f'v_add_u32 v9, {CORR}, v1')
        for t in range(7):
            p(f'ds_read_b128 {V(CO+4*t,4)}, v9 offset:{1024*t}')
        for t in range(7):
            for par in range(2):
                a = V(AC + 8 * t + 4 * par, 4)
                p(f'v_mfma_f32_16x16x32_bf16 {a}, {V(CO+4*t,4)}, {V((XA,XB)[par],4)}, {a}')
        self.stamp()
        p(f's_lshl_b32 {T2}, {sB128}, 2\ns_add_u32 {T2}, {T2}, {sW}\ns_mul_i32 {T2}, {T2}, 114688')
        p(f's_mul_i32 {T3}, {sNQ}, 7168\ns_add_u32 {T2}, {T2}, {T3}\ns_add_u32 {T2}, {T2}, {H1}')
        for t in range(7):
            tb = 48 + 8 * (t & 1)
            ob = 64 + 4 * (t % 4)
            pr = [(AC + 8 * t + 2 * k, tb + 2 * k, k >> 1) for k in range(4)]
            for a, x, par in pr:
                p(f'v_pk_mul_f32 {V(x,2)}, {V(a,2)}, {V(a,2)}')
            for a, x, par in pr:
                p(f'v_pk_fma_f32 {V(x,2)}, {V(x,2)}, {V(PA1,2)}, {V(PA0,2)} op_sel:[0,{par},{par}] op_sel_hi:[1,{par},{par}]')
            for a, x, par in pr:
                p(f'v_pk_mul_f32 {V(x,2)}, {V(x,2)}, {V(a,2)}')
            for k in range(8):
                p(f'v_exp_f32 {V(tb+k)}, {V(tb+k)}')
            for a, x, par in pr:
                p(f'v_pk_fma_f32 {V(x,2)}, {V(x,2)}, {V(PIA,2)}, {V(PIA,2)} op_sel:[0,{par},{par}] op_sel_hi:[1,{par},{par}]')
            for k in range(8):
                p(f'v_rcp_f32 {V(tb+k)}, {V(tb+k)}')
            for a, x, par in pr:
                p(f'v_pk_mul_f32 {V(x,2)}, {V(x,2)}, {V(a,2)}')
            for k in range(4):
                p(f'v_cvt_pk_bf16_f32 {V(ob+k)}, {V(tb+2*k)}, {V(tb+2*k+1)}')
            p(f'v_permlane16_swap_b32 {V(ob)}, {V(ob+2)}\nv_permlane16_swap_b32 {V(ob+1)}, {V(ob+3)}')
            if t == 4:
                p(f's_add_u32 {T2}, {T2}, 4096')
            self.st(p, f'buffer_store_dwordx4 {V(ob,4)}, v1, {S4(SWS)}, {T2} offen offset:{1024*(t&3)}')
        p(f's_lshl_b32 {T2}, {sB128}, 1\ns_lshr_b32 {T3}, {sW}, 1\ns_add_u32 {T2}, {T2}, {T3}\ns_lshl_b32 {T2}, {T2}, 4')
        p(f's_add_u32 {T2}, {T2}, {sNQ}\ns_lshl_b32 {T2}, {T2}, 1\ns_and_b32 {T3}, {sW}, 1\ns_add_u32 {T2}, {T2}, {T3}')
        p(f's_lshl_b32 {T2}, {T2}, 2\ns_add_u32 {T2}, {T2}, {FLG3}')
        self.stamp()
        self.flag(T2)
        self.stamp()

    def p4(self):
        p = self.p
        HR, NS = 16, 23
        B2R, GBR, U = 8, 240, 232
        acc = {(0, 0): V(200, 16), (0, 1): V(216, 16), (1, 0): A(224, 16), (1, 1): A(240, 16)}
        p(f's_lshl_b32 {T2}, {sQ8}, 7')
        p(f'v_lshrrev_b32 v3, 4, v0\nv_lshl_add_u32 v3, v3, 4, {T2}')
        for hh in range(2):
            p(f'global_load_dwordx4 {V(B2R+4*hh,4)}, v3, {S2(pB2)} offset:{64*hh}')
        p(f'v_add_u32 v3, {MT}, v3')
        for hh in range(2):
            p(f'ds_read_b128 {V(GBR+4*hh,4)}, v3 offset:{5*1024+64*hh}')
        self.barrier()
        p(f's_lshl_b32 {T2}, {sB64}, 7\ns_lshl_b32 {T3}, {sW}, 5\ns_add_u32 {T2}, {T2}, {T3}\ns_add_u32 {T2}, {T2}, {FLG3}')
        p('v_and_b32 v4, 7, v0\nv_lshlrev_b32 v4, 2, v4')
        p(f's_mul_i32 {T4}, {sB64}, 229376\ns_mul_i32 {T3}, {sW}, 28672\ns_add_u32 {T4}, {T4}, {T3}\ns_add_u32 {T4}, {T4}, {H1}')
        p(f's_add_u32 {T5}, {T4}, 114688')
        self.stamp()
        self.poll(p, [f'buffer_load_dword v5, v4, {S4(SWS)}, {T2} offen sc1'], ['v5'], 4)
        self.stamp()

        def ld(ks):
            if ks and ks % 4 == 0:
                p(f's_add_u32 {T4}, {T4}, 4096\ns_add_u32 {T5}, {T5}, 4096')
            for rb in range(2):
                p(f'buffer_load_dwordx4 {V(HR+8*(ks%NS)+4*rb,4)}, v1, {S4(SWS)}, {(T4,T5)[rb]} offen offset:{1024*(ks&3)} sc1')
        for ks in range(NS):
            ld(ks)
        for ks in range(28):
            for rb in range(2):
                for cb in range(2):
                    a = acc[(rb, cb)]
                    p(f'v_mfma_f32_32x32x16_bf16 {a}, {A(8*ks+4*cb,4)}, {V(HR+8*(ks%NS)+4*rb,4)}, {a if ks else 0}')
            if ks + NS < 28:
                ld(ks + NS)
        self.stamp()
        WA = 16
        p('v_and_b32 v3, 31, v0\nv_lshlrev_b32 v3, 8, v3\nv_and_b32 v4, 15, v0\nv_lshrrev_b32 v5, 5, v0\nv_xor_b32 v4, v4, v5')
        p(f's_lshl_b32 {T2}, {sW}, 14\ns_add_u32 {T2}, {T2}, {PART}')
        p(f'v_add_u32 v3, {T2}, v3')
        for k in range(8):
            p(f'v_xor_b32 v5, {2*k}, v4\nv_lshl_add_u32 {V(WA+k)}, v5, 4, v3')
        for rb in range(2):
            for cb in range(2):
                base = {(0, 0): ('v', 200), (0, 1): ('v', 216), (1, 0): ('a', 224), (1, 1): ('a', 240)}[(rb, cb)]
                for q4 in range(4):
                    r = (V if base[0] == 'v' else A)(base[1] + 4 * q4, 4)
                    p(f'ds_write_b128 {V(WA+4*cb+q4)}, {r} offset:{8192*rb}')
        RA = 24
        p(f'v_and_b32 v3, 15, v0\nv_lshrrev_b32 v4, 4, v0\nv_lshlrev_b32 v4, 1, v4\nv_xor_b32 v4, v4, v3')
        p(f's_lshl_b32 {T2}, {sW}, 12\ns_add_u32 {T2}, {T2}, {PART}')
        p(f'v_lshl_add_u32 v3, v3, 8, {T2}')
        for k in range(4):
            p(f'v_xor_b32 v5, {8*(k>>1)+(k&1)}, v4\nv_lshl_add_u32 {V(RA+k)}, v5, 4, v3')
        XF, GF, BF, PS = 96, 112, 128, 32
        self.unpack(p, XF, U, 8)
        self.unpack(p, GF, GBR, 8)
        self.unpack(p, BF, B2R, 8)
        self.row_off(p, 'v3', T2)
        self.barrier()
        for w in range(4):
            for k in range(4):
                p(f'ds_read_b128 {V(PS+16*w+4*k,4)}, {V(RA+k)} offset:{16384*w}')
        for w in range(4):
            for k in range(8):
                p(f'v_pk_add_f32 {V(BF+2*k,2)}, {V(BF+2*k,2)}, {V(PS+16*w+2*k,2)}')
        for k in range(8):
            p(f'v_pk_fma_f32 {V(XF+2*k,2)}, {V(BF+2*k,2)}, {V(GF+2*k,2)}, {V(XF+2*k,2)}')
        for k in range(8):
            p(f'v_cvt_pk_bf16_f32 {V(GF+k)}, {V(XF+2*k)}, {V(XF+2*k+1)}')
        for hh in range(2):
            p(f'buffer_store_dwordx4 {V(GF+4*hh,4)}, v3, {S4(SOUT)}, {T2} offen offset:{64*hh}')

    def finish(self):
        p = self.p
        if self.stamps:
            self.stamp()
            p(f's_lshl_b32 {T2}, s2, 2\ns_add_u32 {T2}, {T2}, {sW}\ns_lshl_b32 {T2}, {T2}, 8\ns_add_u32 {T2}, {T2}, {STAMP}')
            p('v_lshlrev_b32 v9, 2, v0')
            p(f'buffer_store_dword v254, v9, {S4(SWS)}, {T2} offen')
            p(f'v_readlane_b32 {T3}, v254, 0')
            p(f'v_subrev_u32 v10, {T3}, v254\nv_lshrrev_b32 v10, 1, v10\nv_lshlrev_b32 v9, 1, v0')
            p(f's_lshl_b32 {T2}, s2, 2\ns_add_u32 {T2}, {T2}, {sW}\ns_cmp_eq_u32 {T2}, {4*77}\ns_cselect_b32 exec_lo, -1, 0\ns_mov_b32 exec_hi, 0')
            p(f'global_store_short v9, v10, {S2(pDBG)}')
        p('s_waitcnt vmcnt(0) lgkmcnt(0)')
        p('s_endpgm')

    def build(self):
        p = self.p
        self.entry()
        self.s0_loads()
        self.s0_mod()
        self.stamp()
        self.s0_stats1()
        self.tr_addr_wq()
        p.wait_vm('G0'); self.barrier(); self.stamp()
        self.wq_tr(0)
        self.barrier()
        self.wq_dma(p, 3)
        self.w2_dma()
        self.s0_stats2()
        self.stamp()
        p.wait_vm('G1'); self.barrier()
        self.wq_tr(1)
        p.wait_vm('G2'); self.barrier()
        self.wq_tr(2)
        p.wait_vm('G3'); self.barrier(); self.stamp()
        self.wq_tr(3)
        self.w2_tr()
        self.mod_poll()
        self.barrier(); self.stamp()
        self.w2_store()
        self.wo_dma()
        self.modulate()
        self.masks()
        self.w1_addr()
        self.barrier(); self.stamp()
        self.p1_gemm()
        p.wait_vm(None); self.barrier(); self.stamp()
        p(f's_lshl_b32 {T2}, s2, 2\ns_add_u32 {T2}, {T2}, {W2F}')
        p(f's_cmp_eq_u32 {sW}, 0\ns_cselect_b32 exec_lo, 1, 0\ns_mov_b32 exec_hi, 0')
        p(f'v_mov_b32 v9, {sTAG}')
        p(f'buffer_store_dword v9, off, {S4(SWS)}, {T2} sc1')
        p('s_mov_b64 exec, -1')
        for m in range(1, 4):
            self.w1_dma(p, m, 'W1')
        self.wo_tr(p)
        self.attention()
        p(f's_lshl_b32 {T2}, {sB64}, 3\ns_add_u32 {T2}, {T2}, {sQ8}\ns_lshl_b32 {T2}, {T2}, 2\ns_add_u32 {T2}, {T2}, {sW}')
        p(f's_lshl_b32 {T2}, {T2}, 2\ns_add_u32 {T2}, {T2}, {FLG1}')
        self.stamp()
        self.flag(T2)
        if self.stop > 1:
            self.p2()
        if self.stop > 2:
            self.gsc()
            self.p3()
        if self.stop > 3:
            self.p4()
        self.finish()
        ins = insert_waits(p.ins)
        ins = insert_nops(ins)
        tail = []
        if self.twin:
            ins, tail = expand_twins(ins, sMODE, 'tw')
        body = render(ins) + render(tail)
        body += '\n'.join(self.tail) + '\n'
        body += f'''L_fail:
    s_mov_b64 exec, 1
    v_lshlrev_b32 v11, 2, v10
    v_mov_b32 v12, s2
    v_add_u32 v12, 1, v12
    global_store_dword v11, v12, {S2(pDBG)}
    s_waitcnt vmcnt(0)
L_end:
    s_endpgm
'''
        return body


HEAD = open('adaLN_cond__sliding_local_dilated__mixer_channel_mlp__prompt.s.ref').read().split('; Override')[0]


def full(**kw):
    g = G(**kw)
    body = g.build()
    return (HEAD + '; @launch grid=(256,1,1) block=(256,1,1) lds=163840\n'
            '.amdgcn_target "amdgcn-amd-amdhsa--gfx950"\n.text\n'
            f'.globl {NAME}\n.p2align 8\n.type {NAME},@function\n{NAME}:\n' + body +
            f'''.section .rodata,"a"
.p2align 6
.amdhsa_kernel {NAME}
  .amdhsa_next_free_vgpr 512
  .amdhsa_next_free_sgpr 102
  .amdhsa_accum_offset 256
  .amdhsa_group_segment_fixed_size 0
  .amdhsa_kernarg_size 104
  .amdhsa_user_sgpr_count 2
  .amdhsa_user_sgpr_kernarg_segment_ptr 1
  .amdhsa_system_sgpr_workgroup_id_x 1
.end_amdhsa_kernel
''')


if __name__ == '__main__':
    import argparse
    ap = argparse.ArgumentParser()
    ap.add_argument('-o', default='k.s')
    ap.add_argument('--stop', type=int, default=9)
    ap.add_argument('--stamps', action='store_true')
    ap.add_argument('--twin', action='store_true')
    a = ap.parse_args()
    open(a.o, 'w').write(full(stop=a.stop, stamps=a.stamps, twin=a.twin))
```

```python
import sys, math, struct
sys.path.insert(0, 'work')
from asmlib import *

NAME = 'adaLN_cond__sliding_local_dilated__mixer_channel_mlp__prompt_kernel'

EPOCH, MODG, XCF, W2F = 0x0, 0x1000, 0x4000, 0x4800
FLG1, FLG2, FLG3 = 0x5000, 0x6000, 0x7000
STAMP = 0x8000 - 0x8000 + 0xE00000
MOM, OBUF, UG, H1, W2T = 0x10000, 0x100000, 0x300000, 0x500000, 0xC00000
SLOT = [0, 49152, 98304, 0]
LA = 65536
W2ST = 147456
RED = 155648
ONES = 156672
MT = 157696
W1B = 36864
CORR = 0
PART = 0
sC, sJ, sW, sTAG, sMODE = 's3', 's4', 's5', 's6', 's7'
SX, SWQ, SWO, SW1, SW2, SWM, SOUT, SWS = 8, 12, 16, 20, 24, 28, 32, 36
pC, pB1, pB2, pDBG = 40, 42, 44, 46
sB64, sQ8, sB128, sNQ = 's88', 's89', 's90', 's91'
T0, T1, T2, T3, T4, T5 = 's92', 's93', 's94', 's95', 's96', 's97'
sSPIN = 's100'


def S4(n): return f's[{n}:{n+3}]'
def S2(n): return f's[{n}:{n+1}]'
def V(n, k=1): return f'v{n}' if k == 1 else f'v[{n}:{n+k-1}]'
def A(n, k=1): return f'a{n}' if k == 1 else f'a[{n}:{n+k-1}]'
def fbits(x): return '0x%08x' % struct.unpack('<I', struct.pack('<f', x))[0]


class G:
    def __init__(self, stop=9, stamps=False, twin=False, spin=200000, ncode=2):
        self.p = Prog()
        self.stop, self.stamps, self.twin, self.spin, self.ncode = stop, stamps, twin, spin, ncode
        self.nst = 0
        self.tail = []

    def stamp(self, p=None):
        if not self.stamps:
            return
        p = p or self.p
        p(f's_memtime s[98:99]\nv_writelane_b32 v254, s98, {self.nst}')
        self.nst += 1

    def barrier(self, p=None):
        p = p or self.p
        p.wait_lgkm(None)
        p('s_barrier')

    def st(self, p, text, tag=None):
        if self.twin:
            p(text, tag=tag, twin=True)
        else:
            p(text + ' sc1', tag=tag)

    def poll(self, p, loads, checks, code):
        L = p.label('poll')
        p.wait_vm(None)
        p(f's_mov_b32 {sSPIN}, {self.spin}')
        p(f'{L}:')
        for l in loads:
            p(l)
        p(f's_sub_u32 {sSPIN}, {sSPIN}, 1')
        p(f's_cbranch_scc1 L_fail{code}')
        p('s_waitcnt vmcnt(0)')
        p(f'v_cmp_ne_u32 vcc, {sTAG}, {checks[0]}')
        for c in checks[1:]:
            p(f'v_cmp_ne_u32 s[98:99], {sTAG}, {c}')
            p('s_or_b64 vcc, vcc, s[98:99]')
        p(f's_cbranch_vccnz {L}')
        self.tail.append(f'L_fail{code}:\n    v_mov_b32 v10, {code}\n    s_branch L_fail')

    def unpack(self, p, dst, src, n):
        for d in range(n):
            p(f'v_lshlrev_b32 {V(dst+2*d)}, 16, {V(src+d)}')
            p(f'v_and_b32 {V(dst+2*d+1)}, 0xffff0000, {V(src+d)}')

    def entry(self):
        p = self.p
        p(f's_cmp_ge_u32 s2, 256\ns_cbranch_scc1 L_end')
        for srd, off in ((SWM, 72), (pC, 64), (SWS, 96), (SX, 0), (SWQ, 8), (SWO, 16), (SW1, 32), (SW2, 48),
                         (SOUT, 80), (pB1, 40), (pB2, 56), (pDBG, 88)):
            p(f's_load_dwordx2 {S2(srd)}, s[0:1], {off}')
        if self.stamps:
            p('s_memrealtime s[96:97]')
        p('s_getpc_b64 s[92:93]')
        p('L_pc:')
        p('v_lshlrev_b32 v3, 7, v0')
        for n in range(self.ncode):
            if n:
                p('v_add_u32 v3, 0x8000, v3')
            p('v_min_u32 v4, L_end-L_pc, v3')
            p('global_load_dword v255, v4, s[92:93]')
        p('v_lshrrev_b32 v4, 6, v0')
        p('v_lshlrev_b32 v2, 4, v0')
        p(f'v_readfirstlane_b32 {sW}, v4')
        p('v_and_b32 v0, 63, v0')
        p('v_lshlrev_b32 v1, 4, v0')
        p(f's_and_b32 {sC}, s2, 7\ns_lshr_b32 {sJ}, s2, 3')
        for srd, size in ((SX, 2097152), (SWQ, 1572864), (SWO, 524288), (SW1, 1835008), (SOUT, 2097152), (SWS, 268435456)):
            p(f's_mov_b32 s{srd+2}, {size}\ns_mov_b32 s{srd+3}, 0x20000')
        p(f's_cmp_lt_u32 {sJ}, 24\ns_cselect_b32 s{SWM+2}, 3145728, 0\ns_mov_b32 s{SWM+3}, 0x20000')
        p(f's_cmp_lt_u32 {sJ}, 28\ns_cselect_b32 s{SW2+2}, 1835008, 0\ns_mov_b32 s{SW2+3}, 0x20000')
        p(f's_lshr_b32 {T2}, {sJ}, 3')
        p(f's_and_b32 {sQ8}, {sJ}, 7')
        p(f's_lshl_b32 {sB64}, {sC}, 2\ns_add_u32 {sB64}, {sB64}, {T2}')
        p(f's_lshr_b32 {sB128}, {sB64}, 1')
        p(f's_and_b32 {sNQ}, {sJ}, 15')
        p(f's_mov_b32 {sMODE}, 1')
        p(f's_lshl_b32 {T2}, {T2}, 6\ns_lshl_b32 {T3}, {sC}, 3\ns_add_u32 {T2}, {T2}, {T3}\ns_add_u32 s101, {T2}, {sQ8}')
        if self.stamps:
            p('v_mov_b32 v254, 0')

    def s0_loads(self):
        p = self.p
        CR, WR, EP = 216, 176, 218
        p(f'v_lshrrev_b32 v3, 1, v0\nv_lshlrev_b32 v3, 2, v3')
        p(f's_lshl_b32 {T3}, {sW}, 7')
        p(f'v_add_u32 v3, {T3}, v3')
        p('v_and_b32 v4, 1, v0\nv_lshlrev_b32 v4, 4, v4')
        p(f's_movk_i32 {T3}, 6144')
        p(f'v_mad_u32_u24 v4, v3, {T3}, v4')
        p('v_lshlrev_b32 v5, 1, v3')
        p(f's_lshl_b32 {T2}, s101, 5')
        self.stamp()
        if self.stamps:
            p('v_mov_b32 v253, s96')
        p(f'global_load_dwordx2 {V(CR,2)}, v5, {S2(pC)}')
        for q in range(4):
            p(f'buffer_load_dwordx4 {V(WR+4*q,4)}, v4, {S4(SWM)}, {T2} offen')
            if q < 3:
                p(f's_add_u32 {T2}, {T2}, 6144')
        p(f'buffer_load_dword {V(EP)}, off, {S4(SWS)}, 0 sc1')
        p(f's_lshl_b32 {T2}, {sB64}, 16\ns_lshl_b32 {T3}, {sW}, 13\ns_add_u32 {T3}, {T2}, {T3}')
        p(f's_and_b32 {T4}, {sW}, 1\ns_lshl_b32 {T4}, {T4}, 3\ns_lshr_b32 {T5}, {sW}, 1\ns_add_u32 {T4}, {T4}, {T5}')
        p(f's_lshl_b32 {T4}, {T4}, 10\ns_add_u32 {T4}, {T4}, {T2}')
        p(f's_cmp_eq_u32 {sB64}, 0\ns_cselect_b32 {T5}, 0, 16384\ns_sub_u32 {T4}, {T4}, {T5}')
        p(f's_add_u32 {T5}, {T3}, 32768')
        p('v_add_u32 v6, 4096, v1')
        for tt in range(5):
            so = T4 if tt == 0 else (T3 if tt < 3 else T5)
            par = 0 if tt == 0 else (tt - 1) & 1
            for rr in range(4):
                q = tt * 4 + rr
                vo = 'v1' if rr < 2 else 'v6'
                p(f'buffer_load_dwordx4 {V(16+8*q+4,4)}, {vo}, {S4(SX)}, {so} offen offset:{(rr&1)*2048+par*1024}')
        p('v_lshrrev_b32 v9, 3, v0')
        p('v_bfe_u32 v10, v0, 4, 1')
        p('v_bfe_u32 v11, v0, 1, 2')
        p('v_xor_b32 v10, v10, v11')
        p('v_and_b32 v11, 1, v0\nv_lshlrev_b32 v11, 4, v11')
        p(f's_movk_i32 {T2}, 3072')
        p(f'v_mad_u32_u24 v11, v9, {T2}, v11')
        p(f's_mul_i32 {T2}, {sW}, 98304\ns_lshl_b32 {T3}, {sQ8}, 7\ns_add_u32 {T2}, {T2}, {T3}')
        p(f'v_add_u32 v11, {T2}, v11')
        p('v_lshl_add_u32 v7, v10, 5, v11')
        p('v_xor_b32 v10, 2, v10')
        p('v_lshl_add_u32 v8, v10, 5, v11')
        p(f'v_add_u32 v8, {8*3072-1024}, v8')
        p(f's_lshl_b32 s87, {sW}, 12')
        p(f's_mov_b32 {T0}, s87')
        for g in range(3):
            self.wq_dma(p, g)

    def wq_dma(self, p, g):
        for part in range(3):
            for h in range(2):
                p(f's_mov_b32 {T2}, {g*128*3072 + h*49152 + part*1024}')
                p(f's_add_u32 m0, {T0}, {SLOT[g] + part*16384 + h*2048}')
                p(f'buffer_load_dwordx4 v7, {S4(SWQ)}, {T2} offen lds', tag=f'G{g}')
                p(f'buffer_load_dwordx4 v8, {S4(SWQ)}, {T2} offen offset:1024 lds', tag=f'G{g}')

    def s0_mod(self):
        p = self.p
        CR, WR, EP = 216, 176, 218
        t = 220
        self.unpack(p, t, CR, 2)
        for q in range(4):
            p(f'v_mul_f32 {V(t+4+q)}, {fbits(-math.log2(math.e))}, {V(t+q)}')
        for q in range(4):
            p(f'v_exp_f32 {V(t+4+q)}, {V(t+4+q)}')
        for q in range(4):
            p(f'v_add_f32 {V(t+4+q)}, 1.0, {V(t+4+q)}')
        for q in range(4):
            p(f'v_rcp_f32 {V(t+4+q)}, {V(t+4+q)}')
        for q in range(4):
            p(f'v_mul_f32 {V(t+q)}, {V(t+q)}, {V(t+4+q)}')
        p(f'v_cvt_pk_bf16_f32 {V(t+4)}, {V(t)}, {V(t+1)}')
        p(f'v_cvt_pk_bf16_f32 {V(t+5)}, {V(t+2)}, {V(t+3)}')
        p(f's_mov_b32 {T2}, 0x05040100\ns_mov_b32 {T3}, 0x07060302')
        P, AC = 192, 228
        for pr in range(2):
            for d in range(4):
                p(f'v_perm_b32 {V(P+8*pr+2*d)}, {V(WR+8*pr+4+d)}, {V(WR+8*pr+d)}, {T2}')
                p(f'v_perm_b32 {V(P+8*pr+2*d+1)}, {V(WR+8*pr+4+d)}, {V(WR+8*pr+d)}, {T3}')
        for e in range(8):
            p(f'v_dot2_f32_bf16 {V(AC+e)}, {V(P+e)}, {V(t+4)}, 0')
        for e in range(8):
            p(f'v_dot2_f32_bf16 {V(AC+e)}, {V(P+8+e)}, {V(t+5)}, {V(AC+e)}')
        p(f'v_readfirstlane_b32 {sTAG}, {V(EP)}')
        for e in range(4):
            p(f'v_permlane32_swap_b32 {V(AC+e)}, {V(AC+e+4)}')
        for e in range(4):
            p(f'v_add_f32 {V(AC+e)}, {V(AC+e)}, {V(AC+e+4)}')
        p(f's_add_u32 {sTAG}, {sTAG}, 1')
        for e in range(2):
            p(f'v_permlane16_swap_b32 {V(AC+e)}, {V(AC+e+2)}')
        for e in range(2):
            p(f'v_add_f32 {V(AC+e)}, {V(AC+e)}, {V(AC+e+2)}')
        for sh in (8, 4, 2):
            for e in range(2):
                p(f'v_add_f32_dpp {V(AC+e)}, {V(AC+e)}, {V(AC+e)} row_ror:{sh} row_mask:0xf bank_mask:0xf')
        p('v_and_b32 v9, 1, v0\nv_lshlrev_b32 v9, 2, v9\nv_lshrrev_b32 v10, 4, v0\nv_add_u32 v9, v9, v10')
        p(f's_lshl_b32 {T2}, {sW}, 6\ns_add_u32 {T2}, {T2}, {RED}')
        p(f'v_lshl_add_u32 v9, v9, 3, {T2}')
        p(f'ds_write_b64 v9, {V(AC,2)}')
        p(f'v_lshrrev_b32 v10, 2, v2\nv_add_u32 v10, {ONES}, v10\nv_mov_b32 v11, 0x3f803f80')
        p('ds_write_b32 v10, v11')
        self.barrier()
        p(f'v_and_b32 v9, 7, v0\nv_lshlrev_b32 v9, 3, v9\nv_add_u32 v10, {RED}, v9')
        for w in range(4):
            p(f'ds_read_b64 {V(AC+2*w,2)}, v10 offset:{64*w}')
        p(f's_lshr_b32 {T2}, s101, 5\ns_cmp_eq_u32 {T2}, 1\ns_cselect_b32 {T3}, 1.0, 0')
        p(f's_cmp_eq_u32 {T2}, 4\ns_cselect_b32 {T3}, 1.0, {T3}')
        p(f'v_pk_add_f32 {V(AC,2)}, {V(AC,2)}, {V(AC+2,2)}')
        p(f'v_pk_add_f32 {V(AC+4,2)}, {V(AC+4,2)}, {V(AC+6,2)}')
        p(f'v_pk_add_f32 {V(AC,2)}, {V(AC,2)}, {V(AC+4,2)}')
        p(f'v_cvt_pk_bf16_f32 {V(AC+2)}, {V(AC)}, {V(AC+1)}')
        self.unpack(p, AC, AC + 2, 1)
        p(f'v_add_f32 {V(AC)}, {T3}, {V(AC)}\nv_add_f32 {V(AC+1)}, {T3}, {V(AC+1)}')
        p(f'v_cvt_pk_bf16_f32 {V(AC)}, {V(AC)}, {V(AC+1)}')
        p(f'v_mov_b32 {V(AC+1)}, {sTAG}')
        p(f's_lshl_b32 {T2}, s101, 6\ns_add_u32 {T2}, {T2}, {MODG}')
        p(f's_cmp_lt_u32 {sJ}, 24\ns_cselect_b32 {T3}, 0xff, 0\ns_cmp_eq_u32 {sW}, 0\ns_cselect_b32 exec_lo, {T3}, 0\ns_mov_b32 exec_hi, 0')
        p(f'buffer_store_dwordx2 {V(AC,2)}, v9, {S4(SWS)}, {T2} offen sc1')
        p(f's_getreg_b32 {T3}, hwreg(HW_REG_XCC_ID, 0, 4)')
        p(f's_cmp_eq_u32 {sW}, 1\ns_cselect_b32 exec_lo, 1, 0')
        p(f'v_mov_b32 {V(AC+2)}, {T3}\nv_mov_b32 {V(AC+3)}, {sTAG}')
        p(f's_lshl_b32 {T2}, {sC}, 5\ns_add_u32 {T2}, {T2}, {sJ}\ns_lshl_b32 {T2}, {T2}, 3\ns_add_u32 {T2}, {T2}, {XCF}')
        p(f'buffer_store_dwordx2 {V(AC+2,2)}, off, {S4(SWS)}, {T2} sc1')
        p('s_mov_b64 exec, -1')

    def s0_stats1(self):
        p = self.p
        S1, S2_ = 176, 196
        p('v_mov_b32 v9, 0x3f803f80')
        for q in range(20):
            raw = 16 + 8 * q + 4
            for d in range(4):
                c1 = '0' if d == 0 else V(S1 + q)
                c2 = '0' if d == 0 else V(S2_ + q)
                p(f'v_dot2_f32_bf16 {V(S1+q)}, {V(raw+d)}, v9, {c1}')
                p(f'v_dot2_f32_bf16 {V(S2_+q)}, {V(raw+d)}, {V(raw+d)}, {c2}')
        for q in range(20):
            self.unpack(p, 16 + 8 * q, 16 + 8 * q + 4, 4)

    def s0_stats2(self):
        p = self.p
        S1, S2_ = 176, 196
        for base in (S1, S2_):
            for tt in range(5):
                b = base + 4 * tt
                p(f'v_permlane32_swap_b32 {V(b)}, {V(b+2)}\nv_permlane32_swap_b32 {V(b+1)}, {V(b+3)}')
        for base in (S1, S2_):
            for tt in range(5):
                b = base + 4 * tt
                p(f'v_add_f32 {V(b)}, {V(b)}, {V(b+2)}\nv_add_f32 {V(b+1)}, {V(b+1)}, {V(b+3)}')
        regs = [base + 4 * tt for base in (S1, S2_) for tt in range(5)]
        for b in regs:
            p(f'v_permlane16_swap_b32 {V(b)}, {V(b+1)}')
        for b in regs:
            p(f'v_add_f32 {V(b)}, {V(b)}, {V(b+1)}')
        for sh in (8, 4, 2, 1):
            for b in regs:
                p(f'v_add_f32_dpp {V(b)}, {V(b)}, {V(b)} row_ror:{sh} row_mask:0xf bank_mask:0xf')
        p(f's_mov_b32 {T2}, {fbits(1/512)}\nv_mov_b32 v9, {fbits(1e-5)}')
        for tt in range(5):
            a, b = S1 + 4 * tt, S2_ + 4 * tt
            p(f'v_mul_f32 {V(a)}, {T2}, {V(a)}')
            p(f'v_fma_f32 {V(b)}, {V(b)}, {T2}, v9')
        for tt in range(5):
            a, b = S1 + 4 * tt, S2_ + 4 * tt
            p(f'v_fma_f32 {V(b)}, -{V(a)}, {V(a)}, {V(b)}')
        for tt in range(5):
            b = S2_ + 4 * tt
            p(f'v_rsq_f32 {V(b)}, {V(b)}')
        for tt in range(5):
            a, b = S1 + 4 * tt, S2_ + 4 * tt
            p(f'v_mul_f32 {V(a)}, -{V(a)}, {V(b)}')
        for q in range(20):
            tt, rr = divmod(q, 4)
            p(f'v_readlane_b32 s{48+2*q}, {V(S2_+4*tt)}, {16*rr}')
            p(f'v_readlane_b32 s{49+2*q}, {V(S1+4*tt)}, {16*rr}')
        for q in range(20):
            for d in range(4):
                r = V(16 + 8 * q + 2 * d, 2)
                p(f'v_pk_fma_f32 {r}, {r}, {S2(48+2*q)}, {S2(48+2*q)} op_sel:[0,0,1] op_sel_hi:[1,0,1]')

    def tr_addr_wq(self):
        p = self.p
        p('v_bfe_u32 v9, v0, 2, 2\nv_lshrrev_b32 v10, 4, v0')
        p('v_lshl_add_u32 v11, v10, 3, v9')
        p('v_lshrrev_b32 v9, 1, v9\nv_and_b32 v10, 1, v10\nv_lshl_or_b32 v9, v10, 1, v9')
        p(f'v_xor_b32 v9, {sW}, v9')
        p('v_lshlrev_b32 v11, 7, v11\nv_lshl_add_u32 v11, v9, 5, v11')
        p('v_and_b32 v9, 3, v0\nv_lshl_add_u32 v12, v9, 3, v11')
        p(f'v_add_u32 v13, {SLOT[1]}, v12\nv_add_u32 v14, {SLOT[2]}, v12')

    def wq_tr(self, g):
        p = self.p
        vb = {0: 'v12', 1: 'v13', 2: 'v14', 3: 'v12'}[g]
        for ss in range(4):
            for part in range(3):
                for e in range(2):
                    a = (part * 16 + 4 * g + ss) * 4 + 2 * e
                    p(f'ds_read_b64_tr_b16 {A(a,2)}, {vb} offset:{part*16384+ss*4096+e*512}')

    def w2_dma(self):
        p = self.p
        p('v_lshrrev_b32 v9, 3, v0\nv_and_b32 v10, 7, v0\nv_lshlrev_b32 v10, 4, v10\nv_lshl_add_u32 v9, v9, 10, v10')
        p('v_add_u32 v10, 7168, v9')
        p(f's_lshl_b32 {T2}, {sJ}, 2\ns_add_u32 {T2}, {T2}, {sW}')
        p(f's_lshl_b32 {T3}, {T2}, 14\ns_lshl_b32 {T4}, {sC}, 7\ns_add_u32 {T3}, {T3}, {T4}')
        p(f's_lshl_b32 {T4}, {sW}, 11\ns_add_u32 m0, {T4}, {W2ST}')
        p(f's_cmp_lt_u32 {sJ}, 28\ns_cselect_b32 {T3}, {T3}, 0')
        p(f'buffer_load_dwordx4 v9, {S4(SW2)}, {T3} offen lds', tag='G3')
        p(f'buffer_load_dwordx4 v10, {S4(SW2)}, {T3} offen offset:1024 lds', tag='G3')

    def w2_tr(self):
        p = self.p
        p('v_lshrrev_b32 v9, 5, v0\nv_bfe_u32 v10, v0, 2, 2\nv_lshl_add_u32 v9, v9, 3, v10\nv_lshlrev_b32 v9, 7, v9')
        p('v_bfe_u32 v10, v0, 4, 1\nv_lshl_add_u32 v9, v10, 5, v9\nv_and_b32 v10, 3, v0\nv_lshl_add_u32 v9, v10, 3, v9')
        p(f's_lshl_b32 {T4}, {sW}, 11\ns_add_u32 {T4}, {T4}, {W2ST}')
        p(f'v_add_u32 v9, {T4}, v9')
        for cb in range(2):
            for e in range(2):
                p(f'ds_read_b64_tr_b16 {V(240+4*cb+2*e,2)}, v9 offset:{64*cb+512*e}')

    def w2_store(self):
        p = self.p
        p(f's_mul_i32 {T2}, {sC}, 112\ns_lshl_b32 {T3}, {sJ}, 2\ns_add_u32 {T2}, {T2}, {T3}\ns_add_u32 {T2}, {T2}, {sW}')
        p(f's_lshl_b32 {T2}, {T2}, 11\ns_add_u32 {T2}, {T2}, {W2T}')
        p(f's_cmp_lt_u32 {sJ}, 28\ns_cselect_b32 {T3}, 0, 0x10000000\ns_cselect_b32 {T2}, {T2}, 0')
        p(f'v_add_u32 v9, {T3}, v1')
        for cb in range(2):
            p(f'buffer_store_dwordx4 {V(240+4*cb,4)}, v9, {S4(SWS)}, {T2} offen offset:{1024*cb} sc1')

    def mod_poll(self):
        p = self.p
        R = 216
        p(f's_mov_b32 {T2}, {MODG}\ns_mov_b32 {T3}, {MODG+4096}\ns_mov_b32 {T4}, {MODG+8192}')
        p(f's_lshl_b32 {T5}, {sC}, 8\ns_add_u32 {T5}, {T5}, {XCF}')
        p('v_and_b32 v9, 31, v0\nv_lshlrev_b32 v9, 3, v9')
        loads = [f'buffer_load_dwordx4 {V(R+4*n,4)}, v2, {S4(SWS)}, {s} offen sc1' for n, s in enumerate((T2, T3, T4))]
        loads.append(f'buffer_load_dwordx2 {V(R+12,2)}, v9, {S4(SWS)}, {T5} offen sc1')
        self.poll(p, loads, [V(R + 1 + 2 * k) for k in range(7)], 1)
        p(f'v_lshrrev_b32 v9, 1, v2\nv_add_u32 v9, {MT}, v9')
        for n in range(3):
            if n:
                p('v_add_u32 v9, 2048, v9')
            p(f'ds_write2_b32 v9, {V(R+4*n)}, {V(R+4*n+2)} offset0:0 offset1:1')
        if self.twin:
            p(f'v_readfirstlane_b32 {T2}, {V(R+12)}')
            p(f'v_cmp_ne_u32 vcc, {T2}, {V(R+12)}')
            p(f's_cmp_lg_u64 vcc, 0\ns_cselect_b32 {sMODE}, 1, 0')

    def wo_dma(self):
        p = self.p
        p('v_lshrrev_b32 v9, 3, v0\nv_bfe_u32 v10, v0, 4, 1\nv_lshlrev_b32 v10, 2, v10\nv_and_b32 v11, 7, v0\nv_xor_b32 v10, v10, v11')
        p('v_lshlrev_b32 v9, 10, v9\nv_lshl_add_u32 v9, v10, 4, v9')
        p('v_add_u32 v10, 7168, v9\nv_add_u32 v11, 7168, v10\nv_add_u32 v15, 7168, v11')
        p(f's_lshl_b32 {T2}, {sW}, 17\ns_lshl_b32 {T3}, {sQ8}, 7\ns_add_u32 {T2}, {T2}, {T3}')
        p(f's_lshl_b32 {T3}, {sW}, 14')
        for m in range(4):
            p(f's_add_u32 m0, {T3}, {4096*m}')
            for k, vv in enumerate(('v9', 'v10', 'v11', 'v15')):
                p(f'buffer_load_dwordx4 {vv}, {S4(SWO)}, {T2} offen offset:{1024*k} lds', tag='WO')
            if m < 3:
                p(f's_add_u32 {T2}, {T2}, 32768')

    def modulate(self):
        p = self.p
        GP, SP, Gf, Sf = 216, 220, 176, 184
        p(f'v_add_u32 v9, {MT}, v1')
        p(f'ds_read_b128 {V(SP,4)}, v9\nds_read_b128 {V(GP,4)}, v9 offset:1024')
        for rr in range(4):
            p(f's_lshl_b32 {T2}, {sW}, 2\ns_add_u32 {T2}, {T2}, {rr}')
            p(f's_lshl_b32 {T3}, {T2}, 10\ns_add_u32 {T3}, {T3}, {LA}')
            p(f'v_xor_b32 v{3+rr}, {T2}, v0\nv_lshl_add_u32 v{3+rr}, v{3+rr}, 4, {T3}')
        self.unpack(p, Gf, GP, 4)
        self.unpack(p, Sf, SP, 4)
        for q in range(20):
            tt, rr = divmod(q, 4)
            b = 16 + 8 * q
            for d in range(4):
                r = V(b + 2 * d, 2)
                p(f'v_pk_fma_f32 {r}, {r}, {V(Gf+2*d,2)}, {V(Sf+2*d,2)}')
            for d in range(4):
                p(f'v_cvt_pk_bf16_f32 {V(b+d)}, {V(b+2*d)}, {V(b+2*d+1)}')
            p(f'ds_write_b128 v{3+rr}, {V(b,4)} offset:{0 if tt == 0 else (tt-1)*16384}')
            if tt == 0:
                p(f'v_add_u32 v{3+rr}, 16384, v{3+rr}')

    def masks(self):
        p = self.p
        p('v_and_b32 v9, 15, v0\nv_lshrrev_b32 v10, 4, v0\nv_lshlrev_b32 v10, 2, v10')
        for r in range(4):
            p(f'v_add_u32 v11, {r}, v10')
            p('v_sub_u32 v15, v9, v11')
            p(f'v_cmp_ge_u32 {S2(48+2*r)}, 7, v15')
            p(f'v_cmp_ge_i32 {S2(56+2*r)}, -9, v15')
            p(f'v_cmp_gt_i32 {S2(64+2*r)}, 0, v15')
            p('v_cmp_ge_u32 vcc, 7, v11')
            p(f's_and_b64 {S2(64+2*r)}, {S2(64+2*r)}, vcc')
        p(f's_cmp_eq_u32 {sB64}, 0')
        for r in range(4):
            p(f's_cselect_b64 {S2(72+2*r)}, 0, {S2(56+2*r)}')
            p(f's_cselect_b64 {S2(64+2*r)}, 0, {S2(64+2*r)}')

    def p1_gemm(self):
        p = self.p
        p('v_and_b32 v9, 15, v0\nv_lshrrev_b32 v10, 4, v0')
        p(f'v_lshlrev_b32 v11, 10, v9\nv_add_u32 v11, {LA}, v11')
        for m in range(4):
            p(f'v_add_u32 v15, {4*m}, v10\nv_xor_b32 v15, v15, v9\nv_lshl_add_u32 v{3+m}, v15, 4, v11')
        RING, NR, PD = 16, 8, 6
        ACC = 48
        steps = [(tt, s) for tt in range(5) for s in range(16)]

        def rd(n):
            tt, s = steps[n]
            if (tt, s) == (1, 0):
                for m in range(4):
                    p(f'v_add_u32 v{3+m}, 16384, v{3+m}')
            off = (0 if tt == 0 else (tt - 1) * 16384) + (s >> 2) * 256
            p(f'ds_read_b128 {V(RING+4*(n%NR),4)}, v{3+(s&3)} offset:{off}')
        for n in range(PD):
            rd(n)
        for n, (tt, s) in enumerate(steps):
            if n + PD < len(steps):
                rd(n + PD)
            f = V(RING + 4 * (n % NR), 4)
            q, k, v = (V(ACC + 12 * tt + 4 * x, 4) for x in range(3))
            if tt:
                p(f'v_mfma_f32_16x16x32_bf16 {q}, {A((0*16+s)*4,4)}, {f}, {q if s else 0}')
            p(f'v_mfma_f32_16x16x32_bf16 {k}, {A((1*16+s)*4,4)}, {f}, {k if s else 0}')
            p(f'v_mfma_f32_16x16x32_bf16 {v}, {f}, {A((2*16+s)*4,4)}, {v if s else 0}')

    def w1_addr(self):
        p = self.p
        p(f's_movk_i32 {T2}, 4682\ns_movk_i32 {T3}, 3584\ns_mul_i32 {T4}, {sNQ}, 224')
        for q in range(7):
            p(f'v_add_u32 v9, {64*q}, v0')
            p(f'v_mul_u32_u24 v10, {T2}, v9\nv_lshrrev_b32 v10, 16, v10')
            p('v_mul_u32_u24 v11, 14, v10\nv_sub_u32 v9, v9, v11')
            p('v_and_b32 v11, 19, v10')
            p('v_bfe_u32 v15, v10, 2, 1\nv_lshl_or_b32 v11, v15, 3, v11')
            p('v_bfe_u32 v15, v10, 3, 1\nv_lshl_or_b32 v11, v15, 2, v11')
            p(f'v_lshlrev_b32 v9, 4, v9\nv_mad_u32_u24 v9, v11, {T3}, v9')
            p(f's_sub_u32 {T5}, {T4}, {1024*(q&3)}')
            p(f'v_add_u32 v{224+q}, {T5}, v9')

    def w1_dma(self, p, m, tag):
        p(f's_add_u32 {T2}, {sW}, {4*m}')
        p(f's_mul_i32 {T3}, {T2}, 7168\ns_mul_i32 {T2}, {T2}, 114688')
        p(f's_add_u32 m0, {T3}, {W1B}')
        for q in range(7):
            if q == 4:
                p(f's_add_u32 m0, {T3}, {W1B+4096}')
            p(f'buffer_load_dwordx4 v{224+q}, {S4(SW1)}, {T2} offen offset:{1024*(q&3)} lds', tag=tag)

    def wo_tr(self, p):
        p('v_bfe_u32 v9, v0, 2, 2\nv_lshrrev_b32 v10, 4, v0\nv_lshl_add_u32 v10, v10, 3, v9\nv_lshlrev_b32 v10, 7, v10')
        p('v_lshrrev_b32 v9, 1, v9\nv_lshlrev_b32 v9, 2, v9\nv_and_b32 v11, 3, v0\nv_or_b32 v9, v9, v11')
        p('v_lshl_add_u32 v12, v9, 4, v10\nv_xor_b32 v9, 4, v9\nv_lshl_add_u32 v13, v9, 4, v10')
        for s in range(16):
            for ct in range(4):
                for e in range(2):
                    p(f'ds_read_b64_tr_b16 {A((s*4+ct)*4+2*e,2)}, v{12+(ct>>1)} offset:{s*4096+e*512+8*(ct&1)}')

    def attention(self):
        p = self.p
        ACC = 48
        QP, KP, VP = 108, 116, 126
        vpos = {3: 0, 1: 2, 0: 4, 2: 6, 4: 8}
        ON, NEG = 136, 140
        SB, MX, PQ, OO, SU, OP = 144, 176, 184, 200, 232, 216
        for k in range(4):
            p(f'v_mov_b32 {V(ON+k)}, 0x3f803f80')
        p(f'v_mov_b32 {V(NEG)}, {fbits(-1e30)}')
        cs = fbits(0.25 * math.log2(math.e))
        p(f's_mov_b32 {T5}, {cs}')
        for tt in range(5):
            b = ACC + 12 * tt
            for h in range(2):
                if tt:
                    p(f'v_cvt_pk_bf16_f32 {V(QP+2*(tt-1)+h)}, {V(b+2*h)}, {V(b+2*h+1)}')
                p(f'v_cvt_pk_bf16_f32 {V(KP+2*tt+h)}, {V(b+4+2*h)}, {V(b+4+2*h+1)}')
                p(f'v_cvt_pk_bf16_f32 {V(VP+vpos[tt]+h)}, {V(b+8+2*h)}, {V(b+8+2*h+1)}')
        prev = {0: 0, 1: 0, 2: 1, 3: 2}
        for t in range(4):
            p(f'v_mfma_f32_16x16x16_bf16 {V(SB+8*t,4)}, {V(KP+2*(t+1),2)}, {V(QP+2*t,2)}, 0')
            p(f'v_mfma_f32_16x16x16_bf16 {V(SB+8*t+4,4)}, {V(KP+2*prev[t],2)}, {V(QP+2*t,2)}, 0')
        pm = {0: 64, 1: 72, 2: 56, 3: 56}
        for t in range(4):
            for r in range(4):
                p(f'v_cndmask_b32 {V(SB+8*t+r)}, {V(NEG)}, {V(SB+8*t+r)}, {S2(48+2*r)}')
                p(f'v_cndmask_b32 {V(SB+8*t+4+r)}, {V(NEG)}, {V(SB+8*t+4+r)}, {S2(pm[t]+2*r)}')
        for t in range(4):
            s = SB + 8 * t
            p(f'v_max3_f32 {V(MX+t)}, {V(s)}, {V(s+1)}, {V(s+2)}')
            p(f'v_max3_f32 {V(MX+4+t)}, {V(s+3)}, {V(s+4)}, {V(s+5)}')
        for t in range(4):
            s = SB + 8 * t
            p(f'v_max3_f32 {V(MX+t)}, {V(MX+t)}, {V(s+6)}, {V(s+7)}')
        for t in range(4):
            p(f'v_max_f32 {V(MX+t)}, {V(MX+t)}, {V(MX+4+t)}')
        for a in (0, 2):
            p(f'v_permlane32_swap_b32 {V(MX+a)}, {V(MX+a+1)}')
        for a in (0, 2):
            p(f'v_max_f32 {V(MX+a)}, {V(MX+a)}, {V(MX+a+1)}')
        for a in (0, 2):
            p(f'v_mov_b32 {V(MX+a+1)}, {V(MX+a)}')
        for a in (0, 2):
            p(f'v_permlane16_swap_b32 {V(MX+a)}, {V(MX+a+1)}')
        for a in (0, 2):
            p(f'v_max_f32 {V(MX+a)}, {V(MX+a)}, {V(MX+a+1)}')
        for a in (0, 2):
            p(f'v_mul_f32 {V(MX+a)}, {T5}, {V(MX+a)}')
        for a in (0, 2):
            p(f'v_mov_b32 {V(MX+a+1)}, {V(MX+a)}')
        for a in (0, 2):
            p(f'v_permlane32_swap_b32 {V(MX+a)}, {V(MX+a+1)}')
        p('v_and_b32 v9, 15, v0\nv_lshlrev_b32 v9, 4, v9\nv_lshrrev_b32 v10, 5, v0\nv_lshl_add_u32 v9, v10, 8, v9')
        p('v_bfe_u32 v10, v0, 4, 1\nv_lshl_add_u32 v9, v10, 3, v9')
        p(f's_lshl_b32 {T2}, {sB64}, 16\ns_lshl_b32 {T3}, {sQ8}, 11\ns_add_u32 {T2}, {T2}, {T3}')
        p(f's_lshl_b32 {T3}, {sW}, 9\ns_add_u32 {T2}, {T2}, {T3}\ns_add_u32 {T2}, {T2}, {OBUF}')
        for t in range(4):
            s = SB + 8 * t
            for r in range(8):
                p(f'v_fma_f32 {V(s+r)}, {V(s+r)}, {T5}, -{V(MX+t)}')
            for r in range(8):
                p(f'v_exp_f32 {V(s+r)}, {V(s+r)}')
            cur_first = t in (0, 2)
            for h in range(4):
                src = s + 2 * h if cur_first else s + (2 * h + 4) % 8
                p(f'v_cvt_pk_bf16_f32 {V(PQ+4*t+h)}, {V(src)}, {V(src+1)}')
        vq = {2: 0, 0: 2, 1: 4, 3: 6}
        for t in range(4):
            p(f'v_mfma_f32_16x16x32_bf16 {V(SU+4*t,4)}, {V(ON,4)}, {V(PQ+4*t,4)}, 0')
            p(f'v_mfma_f32_16x16x32_bf16 {V(OO+4*t,4)}, {V(VP+vq[t],4)}, {V(PQ+4*t,4)}, 0')
        for t in range(4):
            p(f'v_rcp_f32 {V(SU+4*t)}, {V(SU+4*t)}')
        for t in range(4):
            for h in range(2):
                r = V(OO + 4 * t + 2 * h, 2)
                p(f'v_pk_mul_f32 {r}, {r}, {V(SU+4*t,2)} op_sel_hi:[1,0]')
            for h in range(2):
                p(f'v_cvt_pk_bf16_f32 {V(OP+2*t+h)}, {V(OO+4*t+2*h)}, {V(OO+4*t+2*h+1)}')
        for t in range(4):
            if t:
                p(f's_add_u32 {T2}, {T2}, 16384')
            self.st(p, f'buffer_store_dwordx2 {V(OP+2*t,2)}, v9, {S4(SWS)}, {T2} offen')

    def flag(self, off_sgpr):
        p = self.p
        p.wait_vm(None)
        p(f'v_mov_b32 v9, {sTAG}')
        p('s_mov_b64 exec, 1')
        self.st(p, f'buffer_store_dword v9, off, {S4(SWS)}, {off_sgpr}')
        p('s_mov_b64 exec, -1')

    def row_off(self, p, vreg, sreg):
        p(f'v_and_b32 v9, 15, v0\nv_lshlrev_b32 v9, 11, v9\nv_lshrrev_b32 v10, 4, v0\nv_lshl_add_u32 {vreg}, v10, 4, v9')
        p(f's_lshr_b32 {T3}, {sW}, 1\ns_lshl_b32 {T3}, {T3}, 5\ns_and_b32 {T4}, {sW}, 1\ns_add_u32 {T3}, {T3}, {T4}')
        p(f's_lshl_b32 {T4}, {sB64}, 6\ns_add_u32 {T3}, {T3}, {T4}\ns_lshl_b32 {T3}, {T3}, 10')
        p(f's_lshl_b32 {T4}, {sQ8}, 7\ns_add_u32 {sreg}, {T3}, {T4}')

    def p2(self):
        p = self.p
        OF, AC, XR, XF, GAR, GAF, G2P, SBP, G2F, U, UGF, UP, MM = 16, 80, 96, 104, 120, 128, 144, 152, 160, 232, 176, 192, 200
        self.row_off(p, 'v3', T2)
        for hh in range(2):
            p(f'buffer_load_dwordx4 {V(XR+4*hh,4)}, v3, {S4(SX)}, {T2} offen offset:{64*hh}')
        p(f's_lshl_b32 {T2}, {sQ8}, 7\ns_add_u32 {T2}, {T2}, {MT}')
        p(f'v_lshrrev_b32 v9, 4, v0\nv_lshl_add_u32 v4, v9, 4, {T2}')
        for hh in range(2):
            p(f'ds_read_b128 {V(GAR+4*hh,4)}, v4 offset:{2*1024+64*hh}')
            p(f'ds_read_b128 {V(G2P+4*hh,4)}, v4 offset:{4*1024+64*hh}')
            p(f'ds_read_b128 {V(SBP+4*hh,4)}, v4 offset:{3*1024+64*hh}')
        self.barrier()
        self.unpack(p, GAF, GAR, 8)
        self.unpack(p, G2F, G2P, 8)
        self.unpack(p, XF, XR, 8)
        p('v_mov_b32 v8, 0x3f803f80')
        p(f's_lshl_b32 {T2}, {sB64}, 7\ns_add_u32 {T2}, {T2}, {FLG1}')
        p('v_and_b32 v9, 31, v0\nv_lshlrev_b32 v9, 2, v9')
        p(f's_lshl_b32 {T3}, {sB64}, 2\ns_add_u32 {T3}, {T3}, {sW}')
        p(f's_lshl_b32 {T4}, {T3}, 14\ns_add_u32 {T4}, {T4}, {OBUF}')
        self.stamp()
        self.poll(p, [f'buffer_load_dword v10, v9, {S4(SWS)}, {T2} offen sc1'], ['v10'], 2)
        self.stamp()
        for s in range(16):
            if s and s % 4 == 0:
                p(f's_add_u32 {T4}, {T4}, 4096')
            p(f'buffer_load_dwordx4 {V(OF+4*s,4)}, v1, {S4(SWS)}, {T4} offen offset:{1024*(s&3)} sc1')
        p(f's_mov_b32 {T5}, {T3}')
        self.w1_dma(p, 0, 'W1')
        for s in range(16):
            for ct in range(4):
                a = V(AC + 4 * ct, 4)
                p(f'v_mfma_f32_16x16x32_bf16 {a}, {A((s*4+ct)*4,4)}, {V(OF+4*s,4)}, {a if s else 0}')
        p(f's_lshl_b32 {T2}, {T5}, 14\ns_lshl_b32 {T3}, {sQ8}, 11\ns_add_u32 {T2}, {T2}, {T3}\ns_add_u32 {T2}, {T2}, {UG}')
        for k in range(8):
            p(f'v_pk_fma_f32 {V(XF+2*k,2)}, {V(AC+2*k,2)}, {V(GAF+2*k,2)}, {V(XF+2*k,2)}')
        for k in range(8):
            p(f'v_cvt_pk_bf16_f32 {V(U+k)}, {V(XF+2*k)}, {V(XF+2*k+1)}')
        self.unpack(p, XF, U, 8)
        for k in range(8):
            p(f'v_pk_mul_f32 {V(UGF+2*k,2)}, {V(XF+2*k,2)}, {V(G2F+2*k,2)}')
        for k in range(8):
            p(f'v_cvt_pk_bf16_f32 {V(UP+k)}, {V(UGF+2*k)}, {V(UGF+2*k+1)}')
        for hh in range(2):
            self.st(p, f'buffer_store_dwordx4 {V(UP+4*hh,4)}, v1, {S4(SWS)}, {T2} offen offset:{1024*hh}')
        for k in range(8):
            ops = [(U + k, 8), (U + k, U + k), (UP + k, 8), (UP + k, G2P + k), (UP + k, UP + k), (UP + k, SBP + k)]
            for m, (a, b) in enumerate(ops):
                p(f'v_dot2_f32_bf16 {V(MM+m)}, {V(a)}, {V(b)}, {V(MM+m) if k else 0}')
        p('v_and_b32 v9, 15, v0\nv_lshlrev_b32 v9, 5, v9\nv_lshrrev_b32 v10, 4, v0\nv_lshl_add_u32 v9, v10, 3, v9')
        p(f's_lshl_b32 {T2}, {T5}, 3\ns_add_u32 {T2}, {T2}, {sQ8}\ns_lshl_b32 {T2}, {T2}, 9\ns_add_u32 {T2}, {T2}, {MOM}')
        for m in (0, 2, 4):
            p(f'v_permlane32_swap_b32 {V(MM+m)}, {V(MM+m+1)}')
        for m in (0, 2, 4):
            p(f'v_add_f32 {V(MM+m)}, {V(MM+m)}, {V(MM+m+1)}')
        p(f'v_mov_b32 {V(MM+5)}, {V(MM+4)}')
        p(f'v_permlane16_swap_b32 {V(MM)}, {V(MM+2)}')
        p(f'v_permlane16_swap_b32 {V(MM+4)}, {V(MM+5)}')
        p(f'v_add_f32 {V(MM)}, {V(MM)}, {V(MM+2)}')
        p(f'v_add_f32 {V(MM+1)}, {V(MM+4)}, {V(MM+5)}')
        self.st(p, f'buffer_store_dwordx2 {V(MM,2)}, v9, {S4(SWS)}, {T2} offen')
        p(f's_lshl_b32 {T2}, {T5}, 3\ns_add_u32 {T2}, {T2}, {sQ8}\ns_lshl_b32 {T2}, {T2}, 2\ns_add_u32 {T2}, {T2}, {FLG2}')
        self.stamp()
        self.flag(T2)
        self.stamp()

    def w1_tr_addr(self):
        p = self.p
        p('v_lshrrev_b32 v9, 5, v0\nv_bfe_u32 v10, v0, 4, 1\nv_lshlrev_b32 v9, 4, v9\nv_lshl_add_u32 v9, v10, 2, v9')
        p('v_bfe_u32 v10, v0, 2, 2\nv_add_u32 v9, v9, v10')
        p(f's_movk_i32 {T2}, 224')
        p(f'v_and_b32 v10, 3, v0\nv_lshlrev_b32 v10, 3, v10\nv_mad_u32_u24 v9, v9, {T2}, v10')
        p(f'v_add_u32 v3, {W1B}, v9\nv_add_u32 v4, {W1B+57344}, v9')

    def gsc(self):
        p = self.p
        AS, BF, D0, DG, B1R, RR = 16, 224, 80, 88, 92, 96
        p(f's_mul_i32 {T2}, {sNQ}, 112\ns_lshl_b32 {T3}, {sW}, 4\ns_add_u32 {T2}, {T2}, {T3}')
        p(f'v_and_b32 v9, 15, v0\nv_add_u32 v9, {T2}, v9\nv_add_u32 v10, 64, v9\nv_min_u32 v10, 1791, v10')
        p('v_lshlrev_b32 v9, 1, v9\nv_lshlrev_b32 v10, 1, v10')
        p(f'global_load_ushort {V(B1R)}, v9, {S2(pB1)}\nglobal_load_ushort {V(B1R+1)}, v10, {S2(pB1)}')
        self.w1_tr_addr()
        p(f'v_and_b32 v9, 3, v0\nv_mov_b32 v10, {ONES}\nv_mov_b32 v11, {MT+4096}\nv_cmp_eq_u32 vcc, 0, v9\nv_cndmask_b32 v10, v10, v11, vcc')
        p(f'v_mov_b32 v11, {MT+3072}\nv_cmp_eq_u32 vcc, 1, v9\nv_cndmask_b32 v10, v10, v11, vcc')
        p('v_lshrrev_b32 v9, 4, v0\nv_lshl_add_u32 v5, v9, 4, v10')
        p(f's_lshl_b32 {T2}, {sW}, 5')
        p(f'v_add_u32 v6, {T2}, v3\nv_add_u32 v7, {T2}, v4')
        self.barrier()
        for s in range(16):
            p(f'ds_read_b128 {V(AS+4*s,4)}, v5 offset:{64*s}')

        def rd(s):
            for t in range(2):
                for e in range(2):
                    a = BF + 8 * (s & 3) + 4 * t + 2 * e
                    p(f'ds_read_b64_tr_b16 {A(a,2)}, v{6+(s>>3)} offset:{(s&7)*7168+e*1792+128*t}')
        for s in range(3):
            rd(s)
        for s in range(16):
            if s + 3 < 16:
                rd(s + 3)
            f = V(AS + 4 * s, 4)
            p(f'v_mfma_f32_16x16x32_bf16 {V(DG,4)}, {f}, {f}, {V(DG,4) if s else 0}')
            for t in range(2):
                d = V(D0 + 4 * t, 4)
                p(f'v_mfma_f32_16x16x32_bf16 {d}, {f}, {A(BF+8*(s&3)+4*t,4)}, {d if s else 0}')
        p('s_mov_b32 s60, 0xffff0000\ns_mov_b32 s61, 0xffff0000')
        p('s_mov_b32 s62, -1\ns_mov_b32 s63, 0\ns_mov_b32 s64, 0\ns_mov_b32 s65, -1')
        p(f's_lshl_b32 {T2}, {sW}, 10\ns_add_u32 {T2}, {T2}, {CORR}')
        p(f'v_add_u32 v9, {T2}, v1')
        for k in range(3):
            p(f'v_mul_f32 {V(DG+k)}, {fbits(1/512)}, {V(DG+k)}')
        for t in range(2):
            g_, s_, c_ = D0 + 4 * t, D0 + 4 * t + 1, D0 + 4 * t + 2
            r = RR + 4 * t
            t0 = 104 + 10 * t
            p(f'v_cvt_pk_bf16_f32 {V(r+1)}, {V(g_)}, {V(s_)}')
            p(f'v_cvt_pk_bf16_f32 {V(t0)}, {V(c_)}, {V(c_)}')
            p(f'v_lshlrev_b32 {V(t0+1)}, 16, {V(r+1)}')
            p(f'v_and_b32 {V(t0+2)}, 0xffff0000, {V(r+1)}')
            p(f'v_lshlrev_b32 {V(t0)}, 16, {V(t0)}')
            p(f'v_lshlrev_b32 {V(t0+3)}, 16, {V(B1R+t)}')
            p(f'v_sub_f32 {V(g_)}, {V(g_)}, {V(t0+1)}')
            p(f'v_sub_f32 {V(s_)}, {V(s_)}, {V(t0+2)}')
            p(f'v_sub_f32 {V(c_)}, {V(c_)}, {V(t0)}')
            p(f'v_cvt_pk_bf16_f32 {V(r)}, {V(t0+1)}, {V(g_)}')
            p(f'v_cvt_pk_bf16_f32 {V(r+2)}, {V(s_)}, {V(t0+2)}')
            p(f'v_cvt_pk_bf16_f32 {V(r+3)}, {V(t0)}, {V(c_)}')
            p(f'v_cvt_pk_bf16_f32 {V(t0+4)}, {V(t0)}, {V(t0+3)}')
            p(f'v_cndmask_b32 {V(r)}, {V(r)}, {V(t0+4)}, s[60:61]')
            p(f'v_cndmask_b32 {V(r+1)}, {V(r+1)}, {V(B1R+t)}, s[60:61]')
            p(f'v_cndmask_b32 {V(r+2)}, {V(r+2)}, 0, s[60:61]')
            p(f'v_cndmask_b32 {V(r+3)}, {V(r+3)}, 0, s[60:61]')
            p(f'ds_write_b128 v9, {V(r,4)} offset:{4096*t}')
        p(f'v_readlane_b32 s50, {V(DG)}, 0\nv_readlane_b32 s51, {V(DG+1)}, 0\nv_readlane_b32 s52, {V(DG+2)}, 0')
        p(f'v_readlane_b32 s53, {V(DG+1)}, 1\nv_readlane_b32 s54, {V(DG+2)}, 1')
        self.barrier()

    def p3_token(self, q):
        MR, t = 200, 200
        XA, XB, PA0, PA1, PIA = 208, 212, 240, 242, 244
        for par in range(2):
            for k in range(4):
                b = MR + 16 * par + 2 * k
                q(f'v_pk_add_f32 {V(b,2)}, {V(b,2)}, {V(b+8,2)}')
        slots = (0, 1, 2, 4, 5, 6)
        for sl in slots:
            q(f'v_permlane32_swap_b32 {V(MR+sl)}, {V(MR+16+sl)}')
        for sl in slots:
            q(f'v_add_f32 {V(MR+sl)}, {V(MR+sl)}, {V(MR+16+sl)}')
        for sl in slots:
            q(f'v_mov_b32 {V(MR+16+sl)}, {V(MR+sl)}')
        for sl in slots:
            q(f'v_permlane16_swap_b32 {V(MR+sl)}, {V(MR+16+sl)}')
        for sl in slots:
            q(f'v_add_f32 {V(MR+sl)}, {V(MR+sl)}, {V(MR+16+sl)}')
        q(f's_mov_b32 s55, {fbits(1/512)}')
        for sl in slots:
            q(f'v_mul_f32 {V(MR+sl)}, s55, {V(MR+sl)}')
        m0, m4, m2, m1, m5, m3 = (V(MR + sl) for sl in slots)
        w = [V(216 + k) for k in range(16)]
        q(f'v_mov_b32 {w[15]}, {fbits(1e-5)}')
        q(f'v_add_f32 {m1}, {m1}, {w[15]}')
        q(f'v_fma_f32 {w[0]}, -{m0}, {m0}, {m1}')
        q(f'v_rsq_f32 {w[1]}, {w[0]}')
        q(f'v_fma_f32 {m2}, -{m0}, s52, {m2}')
        q(f'v_mul_f32 {w[2]}, s50, {m0}')
        q(f'v_fma_f32 {w[2]}, -2.0, {m3}, {w[2]}')
        q(f'v_fma_f32 {w[2]}, {m0}, {w[2]}, {m4}')
        q(f'v_fma_f32 {m5}, -{m0}, s51, {m5}')
        q(f'v_mul_f32 {w[0]}, {w[0]}, {w[1]}')
        q(f'v_fma_f32 {m2}, {w[1]}, {m2}, s54')
        q(f'v_mul_f32 {w[2]}, {w[1]}, {w[2]}')
        q(f'v_fma_f32 {w[2]}, 2.0, {m5}, {w[2]}')
        q(f'v_fma_f32 {w[2]}, {w[1]}, {w[2]}, s53')
        q(f'v_add_f32 {w[2]}, {w[2]}, {w[15]}')
        q(f'v_fma_f32 {w[2]}, -{m2}, {m2}, {w[2]}')
        q(f'v_rsq_f32 {w[3]}, {w[2]}')
        q(f'v_mul_f32 {w[4]}, -{m2}, {w[0]}')
        q(f'v_sub_f32 {m0}, 0, {m0}')
        q(f'v_mul_f32 {w[2]}, {w[2]}, {w[3]}')
        q(f'v_mul_f32 {w[3]}, {w[1]}, {w[3]}')
        q(f'v_mul_f32 {V(PIA)}, {w[0]}, {w[2]}')
        c0 = -2 * math.sqrt(2 / math.pi) * math.log2(math.e)
        q(f'v_mul_f32 {V(PA0)}, {fbits(c0)}, {w[3]}')
        q(f'v_mul_f32 {w[5]}, {w[3]}, {w[3]}')
        q(f'v_mul_f32 {w[5]}, {fbits(0.044715)}, {w[5]}')
        q(f'v_mul_f32 {V(PA1)}, {w[5]}, {V(PA0)}')
        q(f'v_cvt_pk_bf16_f32 {w[6]}, {m0}, {w[0]}')
        q(f'v_cvt_pk_bf16_f32 {w[7]}, {w[4]}, {V(PIA)}')
        q(f'v_lshlrev_b32 {w[8]}, 16, {w[6]}')
        q(f'v_and_b32 {w[9]}, 0xffff0000, {w[6]}')
        q(f'v_lshlrev_b32 {w[10]}, 16, {w[7]}')
        q(f'v_and_b32 {w[11]}, 0xffff0000, {w[7]}')
        q(f'v_sub_f32 {m0}, {m0}, {w[8]}')
        q(f'v_sub_f32 {w[0]}, {w[0]}, {w[9]}')
        q(f'v_sub_f32 {w[4]}, {w[4]}, {w[10]}')
        q(f'v_sub_f32 {w[5]}, {V(PIA)}, {w[11]}')
        x = [V(MR + 1), V(MR + 2), V(MR + 3), V(MR + 4)]
        q(f'v_cvt_pk_bf16_f32 {x[0]}, {w[8]}, {w[8]}')
        q(f'v_cvt_pk_bf16_f32 {x[1]}, {m0}, {w[9]}')
        q(f'v_cvt_pk_bf16_f32 {x[2]}, {w[9]}, {w[0]}')
        q(f'v_cvt_pk_bf16_f32 {x[3]}, {w[10]}, {w[10]}')
        q(f'v_cvt_pk_bf16_f32 {w[12]}, {w[4]}, {w[11]}')
        q(f'v_cvt_pk_bf16_f32 {w[13]}, {w[5]}, 0')
        q(f'v_cndmask_b32 {x[0]}, {x[0]}, {w[12]}, s[60:61]')
        q(f'v_cndmask_b32 {x[1]}, {x[1]}, {w[13]}, s[60:61]')
        q(f'v_cndmask_b32 {x[2]}, {x[2]}, 0, s[60:61]')
        q(f'v_cndmask_b32 {x[3]}, {x[3]}, 0, s[60:61]')
        for k in range(4):
            q(f'v_cndmask_b32 {V(XA+k)}, 0, {x[k]}, s[62:63]')
            q(f'v_cndmask_b32 {V(XB+k)}, 0, {x[k]}, s[64:65]')
        for r in (PA0, PA1, PIA):
            q(f'v_mov_b32 {V(r+1)}, {V(r)}')
        for r in (PA0, PA1, PIA):
            q(f'v_permlane32_swap_b32 {V(r)}, {V(r+1)}')

    def p3(self):
        p = self.p
        UF, AC, MR = 16, 144, 200
        XA, XB, PA0, PA1, PIA = 208, 212, 240, 242, 244
        p(f's_lshl_b32 {T5}, {sB128}, 3\ns_lshl_b32 {T3}, {sW}, 1\ns_add_u32 {T5}, {T5}, {T3}')
        p(f's_lshl_b32 {T2}, {T5}, 5\ns_add_u32 {T2}, {T2}, {FLG2}\ns_mov_b32 {T3}, {W2F}')
        p('v_and_b32 v9, 15, v0\nv_lshlrev_b32 v5, 5, v9\nv_lshlrev_b32 v9, 2, v9\nv_lshrrev_b32 v10, 4, v0\nv_lshl_add_u32 v5, v10, 10, v5')
        self.stamp()
        self.poll(p, [f'buffer_load_dword v10, v9, {S4(SWS)}, {T2} offen sc1',
                      f'buffer_load_dwordx4 v[12:15], v1, {S4(SWS)}, {T3} offen sc1'], ['v10', 'v12', 'v13', 'v14', 'v15'], 3)
        self.stamp()
        p(f's_lshl_b32 {T2}, {T5}, 12\ns_add_u32 {T2}, {T2}, {MOM}\ns_add_u32 {T3}, {T2}, 4096')
        for par in range(2):
            for cqi in range(2):
                for h in range(2):
                    p(f'buffer_load_dwordx4 {V(MR+16*par+8*cqi+4*h,4)}, v5, {S4(SWS)}, {(T2,T3)[par]} offen offset:{512*cqi+16*h} sc1')
        p(f's_lshl_b32 {T2}, {T5}, 14\ns_add_u32 {T2}, {T2}, {UG}\ns_add_u32 {T3}, {T2}, 16384')
        for s in range(16):
            if s and s % 4 == 0:
                p(f's_add_u32 {T2}, {T2}, 4096\ns_add_u32 {T3}, {T3}, 4096')
            for par in range(2):
                p(f'buffer_load_dwordx4 {V(UF+8*s+4*par,4)}, v1, {S4(SWS)}, {(T2,T3)[par]} offen offset:{1024*(s&3)} sc1')
        p(f's_or_b32 {T2}, s2, {sW}\ns_cmp_eq_u32 {T2}, 0\ns_cselect_b32 exec_lo, 1, 0\ns_mov_b32 exec_hi, 0')
        p(f'v_mov_b32 v9, {sTAG}')
        p(f'buffer_store_dword v9, off, {S4(SWS)}, 0 sc1')
        p('s_mov_b64 exec, -1')
        side = Prog()
        side(f's_mul_i32 {T4}, {sQ8}, 112\ns_mul_i32 {T3}, {sW}, 28\ns_add_u32 {T4}, {T4}, {T3}\ns_lshl_b32 {T4}, {T4}, 11\ns_add_u32 {T4}, {T4}, {W2T}')
        for i in range(56):
            if i and i % 4 == 0:
                side(f's_add_u32 {T4}, {T4}, 4096')
            side(f'buffer_load_dwordx4 {A(4*i,4)}, v1, {S4(SWS)}, {T4} offen offset:{1024*(i&3)} sc1')
        main = Prog()
        NF = 112

        def rd(n):
            s, t = divmod(n, 7)
            for e in range(2):
                main(f'ds_read_b64_tr_b16 {A(224+4*(n%8)+2*e,2)}, v{3+(s>>3)} offset:{(s&7)*7168+e*1792+32*t}')
        pre = Prog()
        for n in range(7):
            s, t = divmod(n, 7)
            for e in range(2):
                pre(f'ds_read_b64_tr_b16 {A(224+4*(n%8)+2*e,2)}, v{3+(s>>3)} offset:{(s&7)*7168+e*1792+32*t}')
        p.extend(pre)
        self.p3_token(p)
        for n in range(NF):
            s, t = divmod(n, 7)
            for par in range(2):
                a = V(AC + 8 * t + 4 * par, 4)
                main(f'v_mfma_f32_16x16x32_bf16 {a}, {A(224+4*(n%8),4)}, {V(UF+8*s+4*par,4)}, {a if s else 0}')
            if n + 7 < NF:
                rd(n + 7)
        p.extend(spread(main, side, lo=20, hi=200, is_slot=lambda i: i.kind == 'mfma'))
        CO = 16
        p(f'v_add_u32 v9, {CORR}, v1')
        for t in range(7):
            p(f'ds_read_b128 {V(CO+4*t,4)}, v9 offset:{1024*t}')
        for t in range(7):
            for par in range(2):
                a = V(AC + 8 * t + 4 * par, 4)
                p(f'v_mfma_f32_16x16x32_bf16 {a}, {V(CO+4*t,4)}, {V((XA,XB)[par],4)}, {a}')
        self.stamp()
        p(f's_lshl_b32 {T2}, {sB128}, 2\ns_add_u32 {T2}, {T2}, {sW}\ns_mul_i32 {T2}, {T2}, 114688')
        p(f's_mul_i32 {T3}, {sNQ}, 7168\ns_add_u32 {T2}, {T2}, {T3}\ns_add_u32 {T2}, {T2}, {H1}')
        for t in range(7):
            tb = 48 + 8 * (t & 1)
            ob = 64 + 4 * (t % 4)
            pr = [(AC + 8 * t + 2 * k, tb + 2 * k, k >> 1) for k in range(4)]
            for a, x, par in pr:
                p(f'v_pk_mul_f32 {V(x,2)}, {V(a,2)}, {V(a,2)}')
            for a, x, par in pr:
                p(f'v_pk_fma_f32 {V(x,2)}, {V(x,2)}, {V(PA1,2)}, {V(PA0,2)} op_sel:[0,{par},{par}] op_sel_hi:[1,{par},{par}]')
            for a, x, par in pr:
                p(f'v_pk_mul_f32 {V(x,2)}, {V(x,2)}, {V(a,2)}')
            for k in range(8):
                p(f'v_exp_f32 {V(tb+k)}, {V(tb+k)}')
            for a, x, par in pr:
                p(f'v_pk_fma_f32 {V(x,2)}, {V(x,2)}, {V(PIA,2)}, {V(PIA,2)} op_sel:[0,{par},{par}] op_sel_hi:[1,{par},{par}]')
            for k in range(8):
                p(f'v_rcp_f32 {V(tb+k)}, {V(tb+k)}')
            for a, x, par in pr:
                p(f'v_pk_mul_f32 {V(x,2)}, {V(x,2)}, {V(a,2)}')
            for k in range(4):
                p(f'v_cvt_pk_bf16_f32 {V(ob+k)}, {V(tb+2*k)}, {V(tb+2*k+1)}')
            p(f'v_permlane16_swap_b32 {V(ob)}, {V(ob+2)}\nv_permlane16_swap_b32 {V(ob+1)}, {V(ob+3)}')
            if t == 4:
                p(f's_add_u32 {T2}, {T2}, 4096')
            self.st(p, f'buffer_store_dwordx4 {V(ob,4)}, v1, {S4(SWS)}, {T2} offen offset:{1024*(t&3)}')
        p(f's_lshl_b32 {T2}, {sB128}, 1\ns_lshr_b32 {T3}, {sW}, 1\ns_add_u32 {T2}, {T2}, {T3}\ns_lshl_b32 {T2}, {T2}, 4')
        p(f's_add_u32 {T2}, {T2}, {sNQ}\ns_lshl_b32 {T2}, {T2}, 1\ns_and_b32 {T3}, {sW}, 1\ns_add_u32 {T2}, {T2}, {T3}')
        p(f's_lshl_b32 {T2}, {T2}, 2\ns_add_u32 {T2}, {T2}, {FLG3}')
        self.stamp()
        self.flag(T2)
        self.stamp()

    def p4(self):
        p = self.p
        HR, NS = 16, 23
        B2R, GBR, U = 8, 240, 232
        acc = {(0, 0): V(200, 16), (0, 1): V(216, 16), (1, 0): A(224, 16), (1, 1): A(240, 16)}
        p(f's_lshl_b32 {T2}, {sQ8}, 7')
        p(f'v_lshrrev_b32 v3, 4, v0\nv_lshl_add_u32 v3, v3, 4, {T2}')
        for hh in range(2):
            p(f'global_load_dwordx4 {V(B2R+4*hh,4)}, v3, {S2(pB2)} offset:{64*hh}')
        p(f'v_add_u32 v3, {MT}, v3')
        for hh in range(2):
            p(f'ds_read_b128 {V(GBR+4*hh,4)}, v3 offset:{5*1024+64*hh}')
        self.barrier()
        p(f's_lshl_b32 {T2}, {sB64}, 7\ns_lshl_b32 {T3}, {sW}, 5\ns_add_u32 {T2}, {T2}, {T3}\ns_add_u32 {T2}, {T2}, {FLG3}')
        p('v_and_b32 v4, 7, v0\nv_lshlrev_b32 v4, 2, v4')
        p(f's_mul_i32 {T4}, {sB64}, 229376\ns_mul_i32 {T3}, {sW}, 28672\ns_add_u32 {T4}, {T4}, {T3}\ns_add_u32 {T4}, {T4}, {H1}')
        p(f's_add_u32 {T5}, {T4}, 114688')
        self.stamp()
        self.poll(p, [f'buffer_load_dword v5, v4, {S4(SWS)}, {T2} offen sc1'], ['v5'], 4)
        self.stamp()

        def ld(ks):
            if ks and ks % 4 == 0:
                p(f's_add_u32 {T4}, {T4}, 4096\ns_add_u32 {T5}, {T5}, 4096')
            for rb in range(2):
                p(f'buffer_load_dwordx4 {V(HR+8*(ks%NS)+4*rb,4)}, v1, {S4(SWS)}, {(T4,T5)[rb]} offen offset:{1024*(ks&3)} sc1')
        for ks in range(NS):
            ld(ks)
        for ks in range(28):
            for rb in range(2):
                for cb in range(2):
                    a = acc[(rb, cb)]
                    p(f'v_mfma_f32_32x32x16_bf16 {a}, {A(8*ks+4*cb,4)}, {V(HR+8*(ks%NS)+4*rb,4)}, {a if ks else 0}')
            if ks + NS < 28:
                ld(ks + NS)
        self.stamp()
        WA = 16
        p('v_and_b32 v3, 31, v0\nv_lshlrev_b32 v3, 8, v3\nv_and_b32 v4, 15, v0\nv_lshrrev_b32 v5, 5, v0\nv_xor_b32 v4, v4, v5')
        p(f's_lshl_b32 {T2}, {sW}, 14\ns_add_u32 {T2}, {T2}, {PART}')
        p(f'v_add_u32 v3, {T2}, v3')
        for k in range(8):
            p(f'v_xor_b32 v5, {2*k}, v4\nv_lshl_add_u32 {V(WA+k)}, v5, 4, v3')
        for rb in range(2):
            for cb in range(2):
                base = {(0, 0): ('v', 200), (0, 1): ('v', 216), (1, 0): ('a', 224), (1, 1): ('a', 240)}[(rb, cb)]
                for q4 in range(4):
                    r = (V if base[0] == 'v' else A)(base[1] + 4 * q4, 4)
                    p(f'ds_write_b128 {V(WA+4*cb+q4)}, {r} offset:{8192*rb}')
        RA = 24
        p(f'v_and_b32 v3, 15, v0\nv_lshrrev_b32 v4, 4, v0\nv_lshlrev_b32 v4, 1, v4\nv_xor_b32 v4, v4, v3')
        p(f's_lshl_b32 {T2}, {sW}, 12\ns_add_u32 {T2}, {T2}, {PART}')
        p(f'v_lshl_add_u32 v3, v3, 8, {T2}')
        for k in range(4):
            p(f'v_xor_b32 v5, {8*(k>>1)+(k&1)}, v4\nv_lshl_add_u32 {V(RA+k)}, v5, 4, v3')
        XF, GF, BF, PS = 96, 112, 128, 32
        self.unpack(p, XF, U, 8)
        self.unpack(p, GF, GBR, 8)
        self.unpack(p, BF, B2R, 8)
        self.row_off(p, 'v3', T2)
        self.barrier()
        for w in range(4):
            for k in range(4):
                p(f'ds_read_b128 {V(PS+16*w+4*k,4)}, {V(RA+k)} offset:{16384*w}')
        for w in range(4):
            for k in range(8):
                p(f'v_pk_add_f32 {V(BF+2*k,2)}, {V(BF+2*k,2)}, {V(PS+16*w+2*k,2)}')
        for k in range(8):
            p(f'v_pk_fma_f32 {V(XF+2*k,2)}, {V(BF+2*k,2)}, {V(GF+2*k,2)}, {V(XF+2*k,2)}')
        for k in range(8):
            p(f'v_cvt_pk_bf16_f32 {V(GF+k)}, {V(XF+2*k)}, {V(XF+2*k+1)}')
        for hh in range(2):
            p(f'buffer_store_dwordx4 {V(GF+4*hh,4)}, v3, {S4(SOUT)}, {T2} offen offset:{64*hh}')

    def finish(self):
        p = self.p
        if self.stamps:
            self.stamp()
            p(f's_lshl_b32 {T2}, s2, 2\ns_add_u32 {T2}, {T2}, {sW}\ns_lshl_b32 {T2}, {T2}, 8\ns_add_u32 {T2}, {T2}, {STAMP}')
            p('v_lshlrev_b32 v9, 2, v0')
            p(f'buffer_store_dword v254, v9, {S4(SWS)}, {T2} offen')
            p(f'v_readlane_b32 {T3}, v254, 0')
            p(f'v_subrev_u32 v10, {T3}, v254\nv_lshrrev_b32 v10, 1, v10\nv_lshlrev_b32 v9, 1, v0')
            p(f's_lshl_b32 {T2}, s2, 2\ns_add_u32 {T2}, {T2}, {sW}\ns_cmp_eq_u32 {T2}, {4*77}\ns_cselect_b32 exec_lo, 0xfffffff, 0\ns_mov_b32 exec_hi, 0')
            p(f'global_store_short v9, v10, {S2(pDBG)}')
            p('s_mov_b64 exec, 1\ns_waitcnt vmcnt(0)\ns_memrealtime s[96:97]\nv_mov_b32 v11, s96\nv_not_b32 v10, v253\nv_mov_b32 v9, 56')
            p(f'global_atomic_umax v9, v10, {S2(pDBG)}\nglobal_atomic_umax v9, v11, {S2(pDBG)} offset:4')
        p('s_waitcnt vmcnt(0) lgkmcnt(0)')
        p('s_endpgm')

    def build(self):
        p = self.p
        self.entry()
        self.s0_loads()
        self.s0_mod()
        self.stamp()
        self.s0_stats1()
        self.tr_addr_wq()
        p.wait_vm('G0'); self.barrier(); self.stamp()
        self.wq_tr(0)
        self.barrier()
        self.wq_dma(p, 3)
        self.w2_dma()
        self.s0_stats2()
        self.stamp()
        p.wait_vm('G1'); self.barrier()
        self.wq_tr(1)
        p.wait_vm('G2'); self.barrier()
        self.wq_tr(2)
        p.wait_vm('G3'); self.barrier(); self.stamp()
        self.wq_tr(3)
        self.w2_tr()
        self.mod_poll()
        self.barrier(); self.stamp()
        self.w2_store()
        self.wo_dma()
        self.modulate()
        self.masks()
        self.w1_addr()
        self.barrier(); self.stamp()
        self.p1_gemm()
        p.wait_vm(None); self.barrier(); self.stamp()
        p(f's_lshl_b32 {T2}, s2, 2\ns_add_u32 {T2}, {T2}, {W2F}')
        p(f's_cmp_eq_u32 {sW}, 0\ns_cselect_b32 exec_lo, 1, 0\ns_mov_b32 exec_hi, 0')
        p(f'v_mov_b32 v9, {sTAG}')
        p(f'buffer_store_dword v9, off, {S4(SWS)}, {T2} sc1')
        p('s_mov_b64 exec, -1')
        for m in range(1, 4):
            self.w1_dma(p, m, 'W1')
        self.wo_tr(p)
        self.attention()
        p(f's_lshl_b32 {T2}, {sB64}, 3\ns_add_u32 {T2}, {T2}, {sQ8}\ns_lshl_b32 {T2}, {T2}, 2\ns_add_u32 {T2}, {T2}, {sW}')
        p(f's_lshl_b32 {T2}, {T2}, 2\ns_add_u32 {T2}, {T2}, {FLG1}')
        self.stamp()
        self.flag(T2)
        if self.stop > 1:
            self.p2()
        if self.stop > 2:
            self.gsc()
            self.p3()
        if self.stop > 3:
            self.p4()
        self.finish()
        ins = insert_waits(p.ins)
        ins = insert_nops(ins)
        tail = []
        if self.twin:
            ins, tail = expand_twins(ins, sMODE, 'tw')
        body = render(ins) + render(tail)
        body += '\n'.join(self.tail) + '\n'
        body += f'''L_fail:
    s_mov_b64 exec, 1
    v_lshlrev_b32 v11, 2, v10
    v_mov_b32 v12, s2
    v_add_u32 v12, 1, v12
    global_store_dword v11, v12, {S2(pDBG)}
    s_waitcnt vmcnt(0)
L_end:
    s_endpgm
'''
        return body


HEAD = open('adaLN_cond__sliding_local_dilated__mixer_channel_mlp__prompt.s.ref').read().split('; Override')[0]


def full(**kw):
    g = G(**kw)
    body = g.build()
    return (HEAD + '; @launch grid=(256,1,1) block=(256,1,1) lds=163840\n'
            '.amdgcn_target "amdgcn-amd-amdhsa--gfx950"\n.text\n'
            f'.globl {NAME}\n.p2align 8\n.type {NAME},@function\n{NAME}:\n' + body +
            f'''.section .rodata,"a"
.p2align 6
.amdhsa_kernel {NAME}
  .amdhsa_next_free_vgpr 512
  .amdhsa_next_free_sgpr 102
  .amdhsa_accum_offset 256
  .amdhsa_group_segment_fixed_size 0
  .amdhsa_kernarg_size 104
  .amdhsa_user_sgpr_count 2
  .amdhsa_user_sgpr_kernarg_segment_ptr 1
  .amdhsa_system_sgpr_workgroup_id_x 1
.end_amdhsa_kernel
''')


if __name__ == '__main__':
    import argparse
    ap = argparse.ArgumentParser()
    ap.add_argument('-o', default='k.s')
    ap.add_argument('--stop', type=int, default=9)
    ap.add_argument('--stamps', action='store_true')
    ap.add_argument('--twin', action='store_true')
    a = ap.parse_args()
    open(a.o, 'w').write(full(stop=a.stop, stamps=a.stamps, twin=a.twin))
```
